```python
import torch

def _softmax(x, axis=-1):
    return torch.softmax(x, dim=axis)
def _gelu(x):
    return torch.nn.functional.gelu(x, approximate="tanh")
def _silu(x):
    return torch.nn.functional.silu(x)
def _sigmoid(x):
    return torch.sigmoid(x)
def _layernorm(x, axis=-1, eps=1e-5):
    m = x.mean(dim=axis, keepdim=True)
    v = x.var(dim=axis, keepdim=True, unbiased=False)
    return (x - m) / torch.sqrt(v + eps)
def _scatter_add(tgt, idx, src, axis=0):
    return tgt.clone().index_add_(axis, idx, src)
def _segment_sum(src, seg, n):
    out = torch.zeros((n,) + src.shape[1:], dtype=src.dtype)
    return out.index_add_(0, seg, src)
def _pad(x, pw):
    flat = tuple(v for pair in reversed(pw) for v in pair)
    return torch.nn.functional.pad(x, flat)

kernel_name = 'standalone__spectral_fnet__prompt'

def setup_inputs():

    _w = (lambda a: (lambda t: t.to(torch.bfloat16) if t.is_floating_point() else t)(torch.as_tensor(a)))
    B, S, D = 1, 2048, 640
    ns = torch.arange(S)[:, None] * torch.arange(S)[None, :]
    nd = torch.arange(D)[:, None] * torch.arange(D)[None, :]
    Ws_re = torch.cos(-2.0 * torch.pi * ns / S).to(float)
    Ws_im = torch.sin(-2.0 * torch.pi * ns / S).to(float)
    Wd_re = torch.cos(-2.0 * torch.pi * nd / D).to(float)
    Wd_im = torch.sin(-2.0 * torch.pi * nd / D).to(float)
    return {
        "x": _w((lambda *s: torch.randn(*s, dtype=torch.bfloat16) * 0.05)(B, S, D)),
        "dft_seq_re": _w(Ws_re),
        "dft_seq_im": _w(Ws_im),
        "dft_hid_re": _w(Wd_re),
        "dft_hid_im": _w(Wd_im),
    }

def reference(x, dft_seq_re, dft_seq_im, dft_hid_re, dft_hid_im):
    a = torch.einsum("bsd,ed->bse", x, dft_hid_re)
    b = torch.einsum("bsd,ed->bse", x, dft_hid_im)
    y = torch.einsum("ts,bse->bte", dft_seq_re, a) - torch.einsum("ts,bse->bte", dft_seq_im, b)
    return y
```

```python
import re

def regs_of(op):
    op = op.strip()
    neg = re.sub(r'^-|^\||\|$', '', op)
    m = re.match(r'^(?:abs\()?([vsa])(\d+)\)?$', neg)
    if m:
        return [(m.group(1), int(m.group(2)))]
    m = re.match(r'^([vsa])\[(\d+):(\d+)\]$', neg)
    if m:
        return [(m.group(1), i) for i in range(int(m.group(2)), int(m.group(3)) + 1)]
    if neg == 'vcc':
        return [('x', 'vcc')]
    if neg == 'exec':
        return [('x', 'exec')]
    if neg == 'm0':
        return [('x', 'm0')]
    return []

TRANS = ('v_exp_f32', 'v_log_f32', 'v_rcp_f32', 'v_rsq_f32', 'v_sqrt_f32', 'v_sin_f32', 'v_cos_f32')

class Ins:
    def __init__(self, text):
        self.text = text
        t = text.split(';')[0].strip()
        self.is_label = t.endswith(':')
        self.is_dir = t.startswith('.')
        self.mn = ''
        self.w = set(); self.r = set()
        self.srcc = set(); self.srcab = set(); self.passes = 0
        self.kind = 'other'
        if not t or self.is_label or self.is_dir:
            self.kind = 'none'
            return
        parts = t.split(None, 1)
        mn = parts[0]
        self.mn = mn
        ops = []
        if len(parts) > 1:
            ops = [o.strip() for o in re.split(r',\s*(?![^\[]*\])', parts[1])]
            last = ops[-1].split()
            ops[-1] = last[0] if last else ''
            self.mods = last[1:]
        base = re.sub(r'_e(32|64)$', '', mn)
        self.base = base
        R = lambda o: set(regs_of(o))
        if mn.startswith('v_mfma'):
            self.kind = 'mfma'
            self.w = R(ops[0]); self.srcab = R(ops[1]) | R(ops[2]); self.srcc = R(ops[3])
            self.r = self.srcab | self.srcc
            self.passes = 8 if '32x32' in mn else 4
        elif mn.startswith('v_'):
            self.kind = 'valu'
            if base in ('v_swap_b32', 'v_permlane32_swap_b32', 'v_permlane16_swap_b32'):
                self.w = R(ops[0]) | R(ops[1]); self.r = set(self.w)
            elif base == 'v_nop':
                pass
            elif base.startswith('v_cmp'):
                self.w = R(ops[0])
                for o in ops[1:]: self.r |= R(o)
                if base.startswith('v_cmpx'): self.w.add(('x', 'exec'))
            elif base in ('v_add_co_u32', 'v_addc_co_u32', 'v_sub_co_u32'):
                self.w = R(ops[0]) | R(ops[1])
                for o in ops[2:]: self.r |= R(o)
            else:
                self.w = R(ops[0])
                for o in ops[1:]: self.r |= R(o)
                if base in ('v_fmac_f32', 'v_pk_fmac_f16', 'v_writelane_b32') : self.r |= self.w
            self.trans = base in TRANS
        elif mn.startswith('buffer_') or mn.startswith('global_'):
            self.kind = 'vmem'
            is_lds = 'lds' in getattr(self, 'mods', []) or '_lds_' in mn
            if 'load' in mn and not is_lds:
                self.w = R(ops[0])
                for o in ops[1:]: self.r |= R(o)
            elif 'atomic' in mn and 'sc0' in getattr(self, 'mods', []) and mn.startswith('global_'):
                self.w = R(ops[0])
                for o in ops[1:]: self.r |= R(o)
            else:
                for o in ops: self.r |= R(o)
                if is_lds: self.r.add(('x', 'm0'))
                if 'store' in mn and ('x3' in mn or 'x4' in mn):
                    self.wide_data = R(ops[0]) if mn.startswith('buffer_') else R(ops[1])
        elif mn.startswith('ds_'):
            self.kind = 'ds'
            if 'read' in mn or 'permute' in mn or 'swizzle' in mn:
                self.w = R(ops[0])
                for o in ops[1:]: self.r |= R(o)
            else:
                for o in ops: self.r |= R(o)
        elif mn.startswith('s_'):
            self.kind = 'salu'
            if mn in ('s_nop',):
                self.kind = 'nop'; self.n = int(ops[0], 0) + 1
            elif mn.startswith('s_cmp') or mn.startswith('s_cbranch') or mn in ('s_branch', 's_waitcnt', 's_barrier', 's_endpgm', 's_setprio', 's_sleep'):
                for o in ops: self.r |= R(o)
            else:
                self.w = R(ops[0])
                for o in ops[1:]: self.r |= R(o)
                if 'saveexec' in mn: self.w.add(('x', 'exec'))

def need(p, c):
    n = 0
    vw = {x for x in p.w if x[0] in 'va'}
    sw = {x for x in p.w if x[0] == 's' or x == ('x', 'vcc')}
    if p.kind == 'valu':
        if c.kind == 'mfma' and (vw & c.r): n = max(n, 2)
        if c.kind == 'mfma' and ('x', 'exec') in p.w: n = max(n, 4)
        if getattr(p, 'trans', False) and c.kind in ('valu',) and not getattr(c, 'trans', False) and (vw & c.r): n = max(n, 1)
        if getattr(p, 'trans', False) and c.kind in ('valu',) and (vw & c.r): n = max(n, 1)
        if c.kind == 'valu' and c.base in ('v_readfirstlane_b32', 'v_readlane_b32') and (vw & c.r): n = max(n, 1)
        if c.kind == 'valu' and c.base.startswith('v_permlane') and (vw & c.r): n = max(n, 2)
        if c.kind == 'valu' and ('dpp' in c.text or 'row_' in c.text or 'quad_perm' in c.text) and (vw & c.r): n = max(n, 2)
        if c.kind == 'vmem' and (sw & c.r): n = max(n, 5)
        if c.kind == 'valu' and (sw & c.r): n = max(n, 2)
        if c.kind == 'salu' and (sw & c.r): n = max(n, 1)
        if ('op_sel' in p.text or 'sdwa' in p.text) and c.kind == 'valu' and (vw & (c.r | c.w)): n = max(n, 1)
        if ('x', 'exec') in p.w and c.kind == 'valu' and c.base in ('v_readfirstlane_b32', 'v_readlane_b32'): n = max(n, 4)
    if p.kind == 'mfma':
        big = p.passes == 8
        if c.kind == 'mfma':
            if p.w & c.srcab: n = max(n, 12 if big else 8)
            if p.w & c.srcc:
                if not (p.w == c.srcc and p.passes == c.passes): n = max(n, 10 if big else 6)
            elif p.w & c.w: n = max(n, 12 if big else 8)
        elif c.kind in ('valu',):
            if p.w & (c.r | c.w): n = max(n, 12 if big else 8)
            if p.srcc & c.w: n = max(n, 7 if big else 3)
        elif c.kind in ('vmem', 'ds'):
            if p.w & (c.r | c.w): n = max(n, 12 if big else 8)
    if p.kind == 'vmem' and hasattr(p, 'wide_data'):
        if c.kind in ('valu', 'mfma') and (p.wide_data & c.w): n = max(n, 2)
        elif p.wide_data & c.w: n = max(n, 1)
    if p.kind == 'salu' and ('x', 'm0') in p.w and ('x', 'm0') in c.r and c.kind in ('vmem', 'ds'): n = max(n, 1)
    return n

class Asm:
    def __init__(self):
        self.lines = []
    def __call__(self, text):
        for l in text.split('\n'):
            l = l.strip()
            if l: self.lines.append(l)
    def pad(self, verbose=False):
        out = []
        hist = []
        total = 0
        for l in self.lines:
            ins = Ins(l)
            if ins.kind == 'none':
                out.append(l); continue
            dist = 0; req = 0
            for p in reversed(hist):
                n = need(p, ins)
                if n - dist > req: req = n - dist
                dist += p.n if p.kind == 'nop' else 1
                if dist > 24: break
            while req > 0:
                k = min(req, 16)
                nop = Ins('s_nop %d' % (k - 1))
                out.append('s_nop %d' % (k - 1)); hist.append(nop); req -= k; total += k
            out.append(l); hist.append(ins)
        if verbose: print('padded states:', total)
        self.lines = out
    def text(self):
        o = []
        for l in self.lines:
            t = l.split(';')[0].strip()
            if t.endswith(':') or t.startswith('.') or l.startswith(';'):
                o.append(l)
            else:
                o.append('    ' + l)
        return '\n'.join(o) + '\n'
```

```python
import sys, struct
sys.path.insert(0, 'gen')
from asmlib import Asm

def f32(x):
    return '0x%08x' % struct.unpack('<I', struct.pack('<f', x))[0]

NB = 2621440

def transpose4(a, base):
    for r in range(4):
        for c in range(r + 1, 4):
            a(f'v_swap_b32 v{base+4*r+c}, v{base+4*c+r}')

def kernel1(a):
    a('k1_kernel:')
    a(f'''
    s_cmp_ge_u32 s2, 160
    s_cbranch_scc1 L_end1
    s_load_dwordx2 s[4:5], s[0:1], 0
    s_load_dwordx2 s[8:9], s[0:1], 56
    v_and_b32 v1, 15, v0
    v_bfe_u32 v2, v0, 4, 2
    v_lshrrev_b32 v3, 6, v0
    v_lshl_add_u32 v4, v2, 6, v1
    v_mul_u32_u24 v4, 10240, v4
    v_lshl_add_u32 v4, v3, 4, v4
    s_and_b32 s12, s2, 7
    s_lshr_b32 s13, s2, 3
    s_mul_i32 s12, s12, 1280
    s_lshl_b32 s13, s13, 6
    s_add_u32 s12, s12, s13
    s_add_u32 s13, s12, 163840
    s_add_u32 s14, s12, {2*163840}
    s_add_u32 s15, s12, {3*163840}
    s_mov_b32 s6, {NB}
    s_mov_b32 s7, 0x20000
    s_mov_b32 s10, {NB}
    s_mov_b32 s11, 0x20000
    s_waitcnt lgkmcnt(0)
    ''')
    for r in range(4):
        a(f'buffer_load_dwordx4 v[{16+4*r}:{19+4*r}], v4, s[4:7], s{12+r} offen')
    FRE, FIM, TC, TS, TN = 32, 36, 40, 44, 48
    a(f'''
    v_cvt_f32_u32 v5, v1
    v_cvt_f32_u32 v6, v2
    v_mul_f32 v5, {f32(1/16)}, v5
    v_mul_f32 v6, 4.0, v6
    v_mul_f32 v6, v6, v5
    v_add_f32 v7, v6, v5
    v_add_f32 v8, v7, v5
    v_add_f32 v9, v8, v5
    ''')
    for r in range(4):
        a(f'v_cos_f32 v10, v{6+r}')
        a(f'v_sin_f32 v11, v{6+r}')
        a(f'v_mul_f32 v12, {f32(1/16)}, v{6+r}')
        a(f'v_cvt_pk_bf16_f32 v{FRE+r}, v10, v11')
        a(f'v_cvt_pk_bf16_f32 v{FIM+r}, -v11, v10')
        a(f'v_cos_f32 v{TC+r}, v12')
        a(f'v_sin_f32 v{TS+r}, v12')
        a(f'v_sin_f32 v{TN+r}, -v12')
    a('s_waitcnt vmcnt(0)')
    transpose4(a, 16)
    D = 52
    O = 84
    for p in range(4):
        a(f'v_mfma_f32_16x16x32_bf16 v[{D+8*p}:{D+8*p+3}], v[{16+4*p}:{19+4*p}], v[{FRE}:{FRE+3}], 0')
        a(f'v_mfma_f32_16x16x32_bf16 v[{D+8*p+4}:{D+8*p+7}], v[{16+4*p}:{19+4*p}], v[{FIM}:{FIM+3}], 0')
    for p in range(4):
        for i in range(4):
            ar, ai = D + 8*p + i, D + 8*p + 4 + i
            t = 8 + i
            a(f'v_mul_f32 v{t}, v{ar}, v{TC+i}')
            a(f'v_fmac_f32 v{t}, v{ai}, v{TS+i}')
            a(f'v_mul_f32 v{ai}, v{ai}, v{TC+i}')
            a(f'v_fmac_f32 v{ai}, v{ar}, v{TN+i}')
        for i in range(4):
            a(f'v_cvt_pk_bf16_f32 v{16+4*p+i}, v{8+i}, v{D+8*p+4+i}')
        a(f'v_mfma_f32_16x16x32_bf16 v[{D+8*p}:{D+8*p+3}], v[{FRE}:{FRE+3}], v[{16+4*p}:{19+4*p}], 0')
        a(f'v_mfma_f32_16x16x32_bf16 v[{D+8*p+4}:{D+8*p+7}], v[{FIM}:{FIM+3}], v[{16+4*p}:{19+4*p}], 0')
    for p in range(4):
        for i in range(4):
            a(f'v_cvt_pk_bf16_f32 v{O+4*i+p}, v{D+8*p+i}, v{D+8*p+4+i}')
    for i in range(4):
        a(f'buffer_store_dwordx4 v[{O+4*i}:{O+4*i+3}], v4, s[8:11], s{12+i} offen')
    a('L_end1:')
    a('s_endpgm')
    return 100

def kernel2(a):
    a('k2_kernel:')
    a(f'''
    s_cmp_ge_u32 s2, 258
    s_cbranch_scc1 L_end2
    s_load_dwordx2 s[4:5], s[0:1], 56
    s_load_dwordx2 s[8:9], s[0:1], 40
    v_and_b32 v1, 15, v0
    v_bfe_u32 v2, v0, 4, 2
    v_lshrrev_b32 v3, 6, v0
    v_mul_u32_u24 v5, 2560, v2
    v_lshl_add_u32 v4, v3, 8, v5
    v_lshl_add_u32 v4, v1, 4, v4
    v_readfirstlane_b32 s20, v3
    s_lshr_b32 s12, s2, 4
    s_lshl_b32 s12, s12, 3
    s_and_b32 s13, s2, 7
    s_or_b32 s12, s12, s13
    s_lshr_b32 s13, s2, 3
    s_cmp_ge_u32 s2, 256
    s_cselect_b32 s12, 128, s12
    s_cselect_b32 s13, s2, s13
    s_and_b32 s13, s13, 1
    s_sub_u32 s14, 256, s12
    s_and_b32 s14, s14, 255
    s_mul_i32 s15, s12, 10240
    s_mul_i32 s16, s14, 10240
    s_lshl_b32 s13, s13, 10
    s_add_u32 s13, s13, s12
    s_mov_b32 s6, {NB}
    s_mov_b32 s7, 0x20000
    s_mov_b32 s10, {NB}
    s_mov_b32 s11, 0x20000
    s_waitcnt lgkmcnt(0)
    buffer_load_dwordx4 v[16:19], v4, s[4:7], s15 offen
    buffer_load_dwordx4 v[20:23], v4, s[4:7], s16 offen
    buffer_load_dwordx4 v[24:27], v4, s[4:7], s15 offen offset:1280
    buffer_load_dwordx4 v[28:31], v4, s[4:7], s16 offen offset:1280
    ''')
    MA = 32
    a(f'''
    v_lshl_add_u32 v5, v3, 9, v5
    v_lshl_add_u32 v5, v1, 5, v5
    v_lshrrev_b32 v6, 2, v1
    v_lshl_add_u32 v6, v6, 8, s13
    v_cvt_f32_u32 v6, v6
    v_mul_f32 v6, {f32(1/2048)}, v6
    v_cvt_f32_u32 v7, v2
    v_add_f32 v7, v7, v7
    v_bfe_u32 v8, v0, 1, 1
    v_and_b32 v9, 1, v0
    v_add_u32 v9, v9, v8
    v_cvt_f32_u32 v9, v9
    v_mul_f32 v9, {f32(0.25)}, v9
    v_fma_f32 v9, v6, v7, v9
    v_add_f32 v10, v9, v6
    v_cos_f32 v11, v9
    v_sin_f32 v12, v9
    v_cos_f32 v13, v10
    v_sin_f32 v14, v10
    v_lshlrev_b32 v8, 4, v8
    v_lshrrev_b32 v8, v8, 0x80000000
    '''.replace('v_lshrrev_b32 v8, v8, 0x80000000', 'v_mov_b32 v15, 0x80000000\n v_lshrrev_b32 v8, v8, v15'))
    a(f'''
    v_mul_f32 v11, 0.5, v11
    v_mul_f32 v12, 0.5, v12
    v_mul_f32 v13, 0.5, v13
    v_mul_f32 v14, 0.5, v14
    v_cvt_pk_bf16_f32 v{MA}, v11, v12
    v_cvt_pk_bf16_f32 v{MA+2}, v13, v14
    v_xor_b32 v{MA+1}, v{MA}, v8
    v_xor_b32 v{MA+3}, v{MA+2}, v8
    s_cmp_eq_u32 s20, 4
    s_cbranch_scc1 L_skipc
    ''')
    BRE, BIM, TC, TS, FC = 36, 46, 56, 72, 88
    a(f'''
    v_bfe_u32 v6, v0, 5, 1
    v_and_b32 v7, 31, v0
    v_bfe_u32 v8, v0, 2, 1
    v_mul_u32_u24 v8, 10, v8
    v_and_b32 v9, 3, v0
    v_add_u32 v8, v8, v9
    v_bfe_u32 v9, v0, 3, 2
    v_lshl_add_u32 v8, v9, 2, v8
    v_cvt_f32_u32 v8, v8
    v_cvt_f32_u32 v9, v6
    v_cvt_f32_u32 v10, v7
    v_mul_f32 v11, {f32(1/20)}, v8
    v_mul_f32 v12, 0.5, v8
    v_mul_f32 v12, v12, v9
    ''')
    for r in range(10):
        if r > 0:
            a(f'v_fmamk_f32 v13, v11, {f32(float(r))}, v12')
        else:
            a('v_mov_b32 v13, v12')
        a('v_cos_f32 v14, v13')
        a('v_sin_f32 v15, v13')
        a(f'v_cvt_pk_bf16_f32 v{BRE+r}, v14, v15')
        a(f'v_cvt_pk_bf16_f32 v{BIM+r}, -v15, v14')
    a(f'''
    v_mul_f32 v11, {f32(1/640)}, v8
    v_mul_f32 v9, 4.0, v9
    v_mul_f32 v12, v11, v9
    v_mul_f32 v10, {f32(1/32)}, v10
    v_mul_f32 v9, v10, v9
    ''')
    for i in range(16):
        off = (i & 3) + 8 * (i >> 2)
        a(f'v_fmamk_f32 v13, v11, {f32(float(off))}, v12')
        a(f'v_fmamk_f32 v8, v10, {f32(float(off))}, v9')
        a(f'v_cos_f32 v{TC+i}, v13')
        a(f'v_sin_f32 v{TS+i}, v13')
        a('v_cos_f32 v14, v8')
        a('v_sin_f32 v15, v8')
        a(f'v_cvt_pk_bf16_f32 v{FC+i}, v14, v15')
    a(f'''
    v_mul_u32_u24 v8, 2560, v3
    v_mul_u32_u24 v9, 1280, v6
    v_add_u32 v8, v8, v9
    v_lshl_add_u32 v8, v7, 2, v8
    v_mul_u32_u24 v9, 40, v7
    v_mul_u32_u24 v10, 20, v6
    v_add_u32 v9, v9, v10
    v_sub_u32 v10, 1260, v9
    s_lshl_b32 s21, s20, 8
    s_add_u32 s21, s21, s13
    s_sub_u32 s22, 2048, s21
    s_and_b32 s22, s22, 2047
    s_mul_i32 s21, s21, 1280
    s_mul_i32 s22, s22, 1280
    L_skipc:
    s_waitcnt vmcnt(0)
    ''')
    transpose4(a, 16)
    DA = 104
    for T in range(4):
        a(f'v_mfma_f32_16x16x32_bf16 v[{DA+4*T}:{DA+4*T+3}], v[{MA}:{MA+3}], v[{16+4*T}:{19+4*T}], 0')
    for T in range(4):
        for pi in range(2):
            a(f'v_cvt_pk_bf16_f32 v{16+2*T+pi}, v{DA+4*T+2*pi}, v{DA+4*T+2*pi+1}')
    a('''
    ds_write_b128 v5, v[16:19]
    ds_write_b128 v5, v[20:23] offset:16
    s_waitcnt lgkmcnt(0)
    s_cmp_eq_u32 s20, 4
    s_cbranch_scc1 L_end2
    s_barrier
    ds_read2_b32 v[16:17], v8 offset0:0 offset1:32
    ds_read2_b32 v[18:19], v8 offset0:64 offset1:96
    ds_read2_b32 v[20:21], v8 offset0:128 offset1:160
    ds_read2_b32 v[22:23], v8 offset0:192 offset1:224
    ds_read_b32 v24, v8 offset:1024
    ds_read_b32 v25, v8 offset:1152
    ''')
    DR, DI = 104, 120
    a('s_waitcnt lgkmcnt(4)')
    a(f'v_mfma_f32_32x32x16_bf16 v[{DR}:{DR+15}], v[16:19], v[{BRE}:{BRE+3}], 0')
    a(f'v_mfma_f32_32x32x16_bf16 v[{DI}:{DI+15}], v[16:19], v[{BIM}:{BIM+3}], 0')
    a('s_waitcnt lgkmcnt(2)')
    a(f'v_mfma_f32_32x32x16_bf16 v[{DR}:{DR+15}], v[20:23], v[{BRE+4}:{BRE+7}], v[{DR}:{DR+15}]')
    a(f'v_mfma_f32_32x32x16_bf16 v[{DI}:{DI+15}], v[20:23], v[{BIM+4}:{BIM+7}], v[{DI}:{DI+15}]')
    a('s_waitcnt lgkmcnt(0)')
    a(f'v_mfma_f32_32x32x8_bf16 v[{DR}:{DR+15}], v[24:25], v[{BRE+8}:{BRE+9}], v[{DR}:{DR+15}]')
    a(f'v_mfma_f32_32x32x8_bf16 v[{DI}:{DI+15}], v[24:25], v[{BIM+8}:{BIM+9}], v[{DI}:{DI+15}]')
    Y = 36
    for s in range(4):
        for r in range(4):
            i = 4 * s + r
            ar, ai, t = DR + i, DI + i, 12 + r
            a(f'v_mul_f32 v{t}, v{ar}, v{TC+i}')
            a(f'v_fmac_f32 v{t}, v{ai}, v{TS+i}')
            a(f'v_mul_f32 v{ai}, v{ai}, v{TC+i}')
            a(f'v_fma_f32 v{ai}, -v{ar}, v{TS+i}, v{ai}')
        for r in range(4):
            a(f'v_cvt_pk_bf16_f32 v{16+4*s+r}, v{12+r}, v{DI+4*s+r}')
        c = '0' if s == 0 else f'v[{Y}:{Y+15}]'
        a(f'v_mfma_f32_32x32x16_bf16 v[{Y}:{Y+15}], v[{16+4*s}:{19+4*s}], v[{FC+4*s}:{FC+4*s+3}], {c}')
    for j in range(5):
        a(f'v_cvt_pk_bf16_f32 v{56+j}, v{Y+2*j}, v{Y+2*j+1}')
    for j in range(5):
        a(f'v_cvt_pk_bf16_f32 v{64+j}, v{Y+10-2*j}, v{Y+9-2*j}')
    a('''
    buffer_store_dwordx4 v[56:59], v9, s[8:11], s21 offen
    buffer_store_dword v60, v9, s[8:11], s21 offen offset:16
    s_and_b32 s12, s12, 127
    s_cbranch_scc0 L_end2
    buffer_store_dwordx4 v[64:67], v10, s[8:11], s22 offen
    buffer_store_dword v68, v10, s[8:11], s22 offen offset:16
    L_end2:
    s_endpgm
    ''')
    return 136

def desc(name, nv):
    nv4 = (nv + 3) // 4 * 4
    return f'''.p2align 6
.amdhsa_kernel {name}
  .amdhsa_next_free_vgpr {nv}
  .amdhsa_next_free_sgpr 32
  .amdhsa_accum_offset {nv4}
  .amdhsa_group_segment_fixed_size 0
  .amdhsa_kernarg_size 64
  .amdhsa_user_sgpr_count 2
  .amdhsa_user_sgpr_kernarg_segment_ptr 1
  .amdhsa_system_sgpr_workgroup_id_x 1
  .amdhsa_float_denorm_mode_32 3
.end_amdhsa_kernel
'''

def main(out):
    hdr = '''; FNet spectral mixing via MFMA FFT (two launches)
; @launch kernel=k1_kernel grid=(160,1,1) block=(256,1,1) lds=0
; @launch kernel=k2_kernel grid=(258,1,1) block=(320,1,1) lds=10240
.amdgcn_target "amdgcn-amd-amdhsa--gfx950"
.text
'''
    a1 = Asm(); n1 = kernel1(a1); a1.pad(True)
    a2 = Asm(); n2 = kernel2(a2); a2.pad(True)
    s = hdr
    s += '.globl k1_kernel\n.p2align 8\n.type k1_kernel,@function\n' + a1.text()
    s += '.globl k2_kernel\n.p2align 8\n.type k2_kernel,@function\n' + a2.text()
    s += '.section .rodata,"a"\n' + desc('k1_kernel', n1) + desc('k2_kernel', n2)
    open(out, 'w').write(s)

main(sys.argv[1])
```

```python
STAMP_OFF = 8 << 20

def stamp(a, k):
    a(f's_memrealtime s[{40+2*k}:{41+2*k}]')

def stamp_store(a, region, ws_lo, wg='s2', nwave_log=3, tid='v0'):
    a(f'''
    s_waitcnt vmcnt(0) lgkmcnt(0)
    s_memrealtime s[46:47]
    s_add_u32 s48, s{ws_lo}, {STAMP_OFF + region * 65536}
    s_addc_u32 s49, s{ws_lo+1}, 0
    s_mov_b32 s50, 65536
    s_mov_b32 s51, 0x20000
    v_lshrrev_b32 v200, 6, {tid}
    s_lshl_b32 s52, {wg}, {nwave_log}
    v_add_u32 v200, s52, v200
    v_lshlrev_b32 v200, 4, v200
    s_waitcnt lgkmcnt(0)
    v_mov_b32 v204, s40
    v_mov_b32 v205, s42
    v_mov_b32 v206, s44
    v_mov_b32 v207, s46
    buffer_store_dwordx4 v[204:207], v200, s[48:51], 0 offen
    ''')

def kd_kernel(a, regions, launch_idx, sel, mult, base_ticks=10000):
    a('kd_kernel:')
    a(f'''
    s_cmp_ge_u32 s2, 1
    s_cbranch_scc1 L_endd
    s_load_dwordx2 s[4:5], s[0:1], 56
    s_load_dwordx2 s[8:9], s[0:1], 48
    s_waitcnt lgkmcnt(0)
    s_add_u32 s4, s4, {STAMP_OFF}
    s_addc_u32 s5, s5, 0
    s_mov_b32 s6, {65536*len(regions)}
    s_mov_b32 s7, 0x20000
    s_sub_u32 s8, s8, {512*launch_idx}
    s_subb_u32 s9, s9, 0
    s_mov_b32 s10, 256
    s_mov_b32 s11, 0x20000
    ''')
    for ri, (nwg, nw) in enumerate(regions):
        for k in range(4):
            a(f'v_mov_b32 v{10+2*k}, -1')
            a(f'v_mov_b32 v{11+2*k}, 0')
        a(f'''
        v_and_b32 v1, 7, v0
        v_min_u32 v1, {nw-1}, v1
        v_lshrrev_b32 v2, 3, v0
        s_mov_b32 s12, 0
        L_red{ri}:
        v_add_u32 v3, s12, v2
        v_min_u32 v3, {nwg-1}, v3
        v_lshl_add_u32 v3, v3, 3, v1
        v_lshlrev_b32 v3, 4, v3
        v_add_u32 v3, {ri*65536}, v3
        buffer_load_dwordx4 v[4:7], v3, s[4:7], 0 offen
        s_waitcnt vmcnt(0)
        ''')
        for k in range(4):
            a(f'v_min_u32 v{10+2*k}, v{10+2*k}, v{4+k}')
            a(f'v_max_u32 v{11+2*k}, v{11+2*k}, v{4+k}')
        a(f'''
        s_add_u32 s12, s12, 8
        s_cmp_lt_u32 s12, {nwg}
        s_cbranch_scc1 L_red{ri}
        ''')
        for j in range(8):
            d = 20 + ri * 8 + j
            a(f's_mov_b32 s{d}, {"-1" if j % 2 == 0 else "0"}')
        a(f's_mov_b32 s12, 0')
        a(f'L_lane{ri}:')
        for j in range(8):
            d = 20 + ri * 8 + j
            a(f'v_readlane_b32 s13, v{10+j}, s12')
            a('s_nop 1')
            a(f'{"s_min_u32" if j % 2 == 0 else "s_max_u32"} s{d}, s{d}, s13')
        a(f'''
        s_add_u32 s12, s12, 1
        s_cmp_lt_u32 s12, 64
        s_cbranch_scc1 L_lane{ri}
        ''')
    n = 8 * len(regions)
    for j in range(n):
        a(f's_sub_u32 s13, s{20+j}, s20')
        a(f'v_mov_b32 v4, s13')
        a(f'v_mov_b32 v5, {4*j}')
        a('buffer_store_dword v4, v5, s[8:11], 0 offen')
    a(f'''
    s_sub_u32 s13, s{20+sel[0]}, s{20+sel[1]}
    s_min_u32 s13, s13, 5000
    s_mul_i32 s13, s13, {mult}
    s_add_u32 s13, s13, {base_ticks}
    L_spin:
    s_memrealtime s[14:15]
    s_waitcnt lgkmcnt(0)
    s_sub_u32 s14, s14, s20
    s_cmp_lt_u32 s14, s13
    s_cbranch_scc1 L_spin
    L_endd:
    s_endpgm
    ''')
```

```python
import sys, struct
sys.path.insert(0, 'gen')
from asmlib import Asm
import diag
DIAG = len(sys.argv) > 2
def st(a, k):
    if DIAG: diag.stamp(a, k)

def f32(x):
    return '0x%08x' % struct.unpack('<I', struct.pack('<f', x))[0]

NB = 2621440

def transpose4(a, base):
    for r in range(4):
        for c in range(r + 1, 4):
            a(f'v_swap_b32 v{base+4*r+c}, v{base+4*c+r}')

def kernel1(a):
    a('k1_kernel:')
    st(a, 0)
    a(f'''
    s_cmp_ge_u32 s2, 160
    s_cbranch_scc1 L_end1
    s_load_dwordx2 s[4:5], s[0:1], 0
    s_load_dwordx2 s[8:9], s[0:1], 56
    v_and_b32 v1, 15, v0
    v_bfe_u32 v2, v0, 4, 2
    v_lshrrev_b32 v3, 6, v0
    v_lshl_add_u32 v4, v2, 6, v1
    v_mul_u32_u24 v4, 10240, v4
    v_lshl_add_u32 v4, v3, 4, v4
    s_and_b32 s12, s2, 7
    s_lshr_b32 s13, s2, 3
    s_mul_i32 s12, s12, 1280
    s_lshl_b32 s13, s13, 6
    s_add_u32 s12, s12, s13
    s_add_u32 s13, s12, 163840
    s_add_u32 s14, s12, {2*163840}
    s_add_u32 s15, s12, {3*163840}
    s_mov_b32 s6, {NB}
    s_mov_b32 s7, 0x20000
    s_mov_b32 s10, {NB}
    s_mov_b32 s11, 0x20000
    s_waitcnt lgkmcnt(0)
    ''')
    for r in range(4):
        a(f'buffer_load_dwordx4 v[{16+4*r}:{19+4*r}], v4, s[4:7], s{12+r} offen')
    FRE, FIM, TC, TS, TN = 32, 36, 40, 44, 48
    a(f'''
    v_cvt_f32_u32 v5, v1
    v_cvt_f32_u32 v6, v2
    v_mul_f32 v5, {f32(1/16)}, v5
    v_mul_f32 v6, 4.0, v6
    v_mul_f32 v6, v6, v5
    v_add_f32 v7, v6, v5
    v_add_f32 v8, v7, v5
    v_add_f32 v9, v8, v5
    ''')
    for r in range(4):
        a(f'v_cos_f32 v10, v{6+r}')
        a(f'v_sin_f32 v11, v{6+r}')
        a(f'v_mul_f32 v12, {f32(1/16)}, v{6+r}')
        a(f'v_cvt_pk_bf16_f32 v{FRE+r}, v10, v11')
        a(f'v_cvt_pk_bf16_f32 v{FIM+r}, -v11, v10')
        a(f'v_cos_f32 v{TC+r}, v12')
        a(f'v_sin_f32 v{TS+r}, v12')
        a(f'v_sin_f32 v{TN+r}, -v12')
    a('s_waitcnt vmcnt(0)')
    st(a, 1)
    transpose4(a, 16)
    D = 52
    O = 84
    for p in range(4):
        a(f'v_mfma_f32_16x16x32_bf16 v[{D+8*p}:{D+8*p+3}], v[{16+4*p}:{19+4*p}], v[{FRE}:{FRE+3}], 0')
        a(f'v_mfma_f32_16x16x32_bf16 v[{D+8*p+4}:{D+8*p+7}], v[{16+4*p}:{19+4*p}], v[{FIM}:{FIM+3}], 0')
    for p in range(4):
        for i in range(4):
            ar, ai = D + 8*p + i, D + 8*p + 4 + i
            t = 8 + i
            a(f'v_mul_f32 v{t}, v{ar}, v{TC+i}')
            a(f'v_fmac_f32 v{t}, v{ai}, v{TS+i}')
            a(f'v_mul_f32 v{ai}, v{ai}, v{TC+i}')
            a(f'v_fmac_f32 v{ai}, v{ar}, v{TN+i}')
        for i in range(4):
            a(f'v_cvt_pk_bf16_f32 v{16+4*p+i}, v{8+i}, v{D+8*p+4+i}')
        a(f'v_mfma_f32_16x16x32_bf16 v[{D+8*p}:{D+8*p+3}], v[{FRE}:{FRE+3}], v[{16+4*p}:{19+4*p}], 0')
        a(f'v_mfma_f32_16x16x32_bf16 v[{D+8*p+4}:{D+8*p+7}], v[{FIM}:{FIM+3}], v[{16+4*p}:{19+4*p}], 0')
    for p in range(4):
        for i in range(4):
            a(f'v_cvt_pk_bf16_f32 v{O+4*i+p}, v{D+8*p+i}, v{D+8*p+4+i}')
    for i in range(4):
        a(f'buffer_store_dwordx4 v[{O+4*i}:{O+4*i+3}], v4, s[8:11], s{12+i} offen')
    st(a, 2)
    if DIAG: diag.stamp_store(a, 0, 8)
    a('L_end1:')
    a('s_endpgm')
    return 208 if DIAG else 100

def kernel2(a):
    a('k2_kernel:')
    st(a, 0)
    a(f'''
    s_cmp_ge_u32 s2, 258
    s_cbranch_scc1 L_end2
    s_load_dwordx2 s[4:5], s[0:1], 56
    s_load_dwordx2 s[8:9], s[0:1], 40
    v_and_b32 v1, 15, v0
    v_bfe_u32 v2, v0, 4, 2
    v_lshrrev_b32 v3, 6, v0
    v_mul_u32_u24 v5, 2560, v2
    v_lshl_add_u32 v4, v3, 8, v5
    v_lshl_add_u32 v4, v1, 4, v4
    v_readfirstlane_b32 s20, v3
    s_lshr_b32 s12, s2, 4
    s_lshl_b32 s12, s12, 3
    s_and_b32 s13, s2, 7
    s_or_b32 s12, s12, s13
    s_lshr_b32 s13, s2, 3
    s_cmp_ge_u32 s2, 256
    s_cselect_b32 s12, 128, s12
    s_cselect_b32 s13, s2, s13
    s_and_b32 s13, s13, 1
    s_sub_u32 s14, 256, s12
    s_and_b32 s14, s14, 255
    s_mul_i32 s15, s12, 10240
    s_mul_i32 s16, s14, 10240
    s_lshl_b32 s13, s13, 10
    s_add_u32 s13, s13, s12
    s_mov_b32 s6, {NB}
    s_mov_b32 s7, 0x20000
    s_mov_b32 s10, {NB}
    s_mov_b32 s11, 0x20000
    s_waitcnt lgkmcnt(0)
    buffer_load_dwordx4 v[16:19], v4, s[4:7], s15 offen
    buffer_load_dwordx4 v[20:23], v4, s[4:7], s16 offen
    buffer_load_dwordx4 v[24:27], v4, s[4:7], s15 offen offset:1280
    buffer_load_dwordx4 v[28:31], v4, s[4:7], s16 offen offset:1280
    ''')
    MA = 32
    a(f'''
    v_lshl_add_u32 v5, v3, 9, v5
    v_lshl_add_u32 v5, v1, 5, v5
    v_lshrrev_b32 v6, 2, v1
    v_lshl_add_u32 v6, v6, 8, s13
    v_cvt_f32_u32 v6, v6
    v_mul_f32 v6, {f32(1/2048)}, v6
    v_cvt_f32_u32 v7, v2
    v_add_f32 v7, v7, v7
    v_bfe_u32 v8, v0, 1, 1
    v_and_b32 v9, 1, v0
    v_add_u32 v9, v9, v8
    v_cvt_f32_u32 v9, v9
    v_mul_f32 v9, {f32(0.25)}, v9
    v_fma_f32 v9, v6, v7, v9
    v_add_f32 v10, v9, v6
    v_cos_f32 v11, v9
    v_sin_f32 v12, v9
    v_cos_f32 v13, v10
    v_sin_f32 v14, v10
    v_lshlrev_b32 v8, 4, v8
    v_lshrrev_b32 v8, v8, 0x80000000
    '''.replace('v_lshrrev_b32 v8, v8, 0x80000000', 'v_mov_b32 v15, 0x80000000\n v_lshrrev_b32 v8, v8, v15'))
    a(f'''
    v_mul_f32 v11, 0.5, v11
    v_mul_f32 v12, 0.5, v12
    v_mul_f32 v13, 0.5, v13
    v_mul_f32 v14, 0.5, v14
    v_cvt_pk_bf16_f32 v{MA}, v11, v12
    v_cvt_pk_bf16_f32 v{MA+2}, v13, v14
    v_xor_b32 v{MA+1}, v{MA}, v8
    v_xor_b32 v{MA+3}, v{MA+2}, v8
    s_cmp_eq_u32 s20, 4
    s_cbranch_scc1 L_skipc
    ''')
    BRE, BIM, TC, TS, FC = 36, 46, 56, 72, 88
    a(f'''
    v_bfe_u32 v6, v0, 5, 1
    v_and_b32 v7, 31, v0
    v_bfe_u32 v8, v0, 2, 1
    v_mul_u32_u24 v8, 10, v8
    v_and_b32 v9, 3, v0
    v_add_u32 v8, v8, v9
    v_bfe_u32 v9, v0, 3, 2
    v_lshl_add_u32 v8, v9, 2, v8
    v_cvt_f32_u32 v8, v8
    v_cvt_f32_u32 v9, v6
    v_cvt_f32_u32 v10, v7
    v_mul_f32 v11, {f32(1/20)}, v8
    v_mul_f32 v12, 0.5, v8
    v_mul_f32 v12, v12, v9
    ''')
    for r in range(10):
        if r > 0:
            a(f'v_fmamk_f32 v13, v11, {f32(float(r))}, v12')
        else:
            a('v_mov_b32 v13, v12')
        a('v_cos_f32 v14, v13')
        a('v_sin_f32 v15, v13')
        a(f'v_cvt_pk_bf16_f32 v{BRE+r}, v14, v15')
        a(f'v_cvt_pk_bf16_f32 v{BIM+r}, -v15, v14')
    a(f'''
    v_mul_f32 v11, {f32(1/640)}, v8
    v_mul_f32 v9, 4.0, v9
    v_mul_f32 v12, v11, v9
    v_mul_f32 v10, {f32(1/32)}, v10
    v_mul_f32 v9, v10, v9
    ''')
    for i in range(16):
        off = (i & 3) + 8 * (i >> 2)
        a(f'v_fmamk_f32 v13, v11, {f32(float(off))}, v12')
        a(f'v_fmamk_f32 v8, v10, {f32(float(off))}, v9')
        a(f'v_cos_f32 v{TC+i}, v13')
        a(f'v_sin_f32 v{TS+i}, v13')
        a('v_cos_f32 v14, v8')
        a('v_sin_f32 v15, v8')
        a(f'v_cvt_pk_bf16_f32 v{FC+i}, v14, v15')
    a(f'''
    v_mul_u32_u24 v8, 2560, v3
    v_mul_u32_u24 v9, 1280, v6
    v_add_u32 v8, v8, v9
    v_lshl_add_u32 v8, v7, 2, v8
    v_mul_u32_u24 v9, 40, v7
    v_mul_u32_u24 v10, 20, v6
    v_add_u32 v9, v9, v10
    v_sub_u32 v10, 1260, v9
    s_lshl_b32 s21, s20, 8
    s_add_u32 s21, s21, s13
    s_sub_u32 s22, 2048, s21
    s_and_b32 s22, s22, 2047
    s_mul_i32 s21, s21, 1280
    s_mul_i32 s22, s22, 1280
    L_skipc:
    s_waitcnt vmcnt(0)
    ''')
    st(a, 1)
    transpose4(a, 16)
    DA = 104
    for T in range(4):
        a(f'v_mfma_f32_16x16x32_bf16 v[{DA+4*T}:{DA+4*T+3}], v[{MA}:{MA+3}], v[{16+4*T}:{19+4*T}], 0')
    for T in range(4):
        for pi in range(2):
            a(f'v_cvt_pk_bf16_f32 v{16+2*T+pi}, v{DA+4*T+2*pi}, v{DA+4*T+2*pi+1}')
    a('''
    ds_write_b128 v5, v[16:19]
    ds_write_b128 v5, v[20:23] offset:16
    s_waitcnt lgkmcnt(0)
    s_cmp_eq_u32 s20, 4
    s_cbranch_scc1 L_end2
    s_barrier
    ds_read2_b32 v[16:17], v8 offset0:0 offset1:32
    ds_read2_b32 v[18:19], v8 offset0:64 offset1:96
    ds_read2_b32 v[20:21], v8 offset0:128 offset1:160
    ds_read2_b32 v[22:23], v8 offset0:192 offset1:224
    ds_read_b32 v24, v8 offset:1024
    ds_read_b32 v25, v8 offset:1152
    ''')
    DR, DI = 104, 120
    a('s_waitcnt lgkmcnt(4)')
    a(f'v_mfma_f32_32x32x16_bf16 v[{DR}:{DR+15}], v[16:19], v[{BRE}:{BRE+3}], 0')
    a(f'v_mfma_f32_32x32x16_bf16 v[{DI}:{DI+15}], v[16:19], v[{BIM}:{BIM+3}], 0')
    a('s_waitcnt lgkmcnt(2)')
    a(f'v_mfma_f32_32x32x16_bf16 v[{DR}:{DR+15}], v[20:23], v[{BRE+4}:{BRE+7}], v[{DR}:{DR+15}]')
    a(f'v_mfma_f32_32x32x16_bf16 v[{DI}:{DI+15}], v[20:23], v[{BIM+4}:{BIM+7}], v[{DI}:{DI+15}]')
    a('s_waitcnt lgkmcnt(0)')
    a(f'v_mfma_f32_32x32x8_bf16 v[{DR}:{DR+15}], v[24:25], v[{BRE+8}:{BRE+9}], v[{DR}:{DR+15}]')
    a(f'v_mfma_f32_32x32x8_bf16 v[{DI}:{DI+15}], v[24:25], v[{BIM+8}:{BIM+9}], v[{DI}:{DI+15}]')
    Y = 36
    for s in range(4):
        for r in range(4):
            i = 4 * s + r
            ar, ai, t = DR + i, DI + i, 12 + r
            a(f'v_mul_f32 v{t}, v{ar}, v{TC+i}')
            a(f'v_fmac_f32 v{t}, v{ai}, v{TS+i}')
            a(f'v_mul_f32 v{ai}, v{ai}, v{TC+i}')
            a(f'v_fma_f32 v{ai}, -v{ar}, v{TS+i}, v{ai}')
        for r in range(4):
            a(f'v_cvt_pk_bf16_f32 v{16+4*s+r}, v{12+r}, v{DI+4*s+r}')
        c = '0' if s == 0 else f'v[{Y}:{Y+15}]'
        a(f'v_mfma_f32_32x32x16_bf16 v[{Y}:{Y+15}], v[{16+4*s}:{19+4*s}], v[{FC+4*s}:{FC+4*s+3}], {c}')
    for j in range(5):
        a(f'v_cvt_pk_bf16_f32 v{56+j}, v{Y+2*j}, v{Y+2*j+1}')
    for j in range(5):
        a(f'v_cvt_pk_bf16_f32 v{64+j}, v{Y+10-2*j}, v{Y+9-2*j}')
    a('''
    buffer_store_dwordx4 v[56:59], v9, s[8:11], s21 offen
    buffer_store_dword v60, v9, s[8:11], s21 offen offset:16
    s_and_b32 s12, s12, 127
    s_cbranch_scc0 L_nomir
    buffer_store_dwordx4 v[64:67], v10, s[8:11], s22 offen
    buffer_store_dword v68, v10, s[8:11], s22 offen offset:16
    L_nomir:
    ''')
    st(a, 2)
    if DIAG: diag.stamp_store(a, 1, 4)
    a('L_end2:')
    a('s_endpgm')
    return 208 if DIAG else 136

def desc(name, nv):
    nv4 = (nv + 3) // 4 * 4
    return f'''.p2align 6
.amdhsa_kernel {name}
  .amdhsa_next_free_vgpr {nv}
  .amdhsa_next_free_sgpr 64
  .amdhsa_accum_offset {nv4}
  .amdhsa_group_segment_fixed_size 0
  .amdhsa_kernarg_size 64
  .amdhsa_user_sgpr_count 2
  .amdhsa_user_sgpr_kernarg_segment_ptr 1
  .amdhsa_system_sgpr_workgroup_id_x 1
  .amdhsa_float_denorm_mode_32 3
.end_amdhsa_kernel
'''

def main(out):
    hdr = '''; FNet spectral mixing via MFMA FFT (two launches)
; @launch kernel=k1_kernel grid=(160,1,1) block=(256,1,1) lds=0
; @launch kernel=k2_kernel grid=(258,1,1) block=(320,1,1) lds=10240
.amdgcn_target "amdgcn-amd-amdhsa--gfx950"
.text
'''
    a1 = Asm(); n1 = kernel1(a1); a1.pad(True)
    a2 = Asm(); n2 = kernel2(a2); a2.pad(True)
    s = hdr
    s += '.globl k1_kernel\n.p2align 8\n.type k1_kernel,@function\n' + a1.text()
    s += '.globl k2_kernel\n.p2align 8\n.type k2_kernel,@function\n' + a2.text()
    extra = ''
    if DIAG:
        sel = tuple(int(x) for x in sys.argv[2].split(','))
        ad = Asm(); diag.kd_kernel(ad, [(160, 4), (258, 4)], 0, sel[:2], sel[2]); ad.pad()
        s += '.globl kd_kernel\n.p2align 8\n.type kd_kernel,@function\n' + ad.text()
        s = s.replace('lds=10240\n', 'lds=10240\n; @launch kernel=kd_kernel grid=(1,1,1) block=(64,1,1) lds=0\n')
        extra = desc('kd_kernel', 32)
    s += '.section .rodata,"a"\n' + desc('k1_kernel', n1) + desc('k2_kernel', n2) + extra
    open(out, 'w').write(s)

main(sys.argv[1])
```

```python
STAMP_OFF = 8 << 20

def stamp(a, k):
    a(f's_memrealtime s[{40+2*k}:{41+2*k}]')

def stamp_store(a, region, ws_lo, wg='s2', nwave_log=3, tid='v0'):
    a(f'''
    s_waitcnt vmcnt(0) lgkmcnt(0)
    s_memrealtime s[46:47]
    s_add_u32 s48, s{ws_lo}, {STAMP_OFF + region * 65536}
    s_addc_u32 s49, s{ws_lo+1}, 0
    s_mov_b32 s50, 65536
    s_mov_b32 s51, 0x20000
    v_lshrrev_b32 v200, 6, {tid}
    s_lshl_b32 s52, {wg}, {nwave_log}
    v_add_u32 v200, s52, v200
    v_lshlrev_b32 v200, 4, v200
    s_waitcnt lgkmcnt(0)
    v_mov_b32 v204, s40
    v_mov_b32 v205, s42
    v_mov_b32 v206, s44
    v_mov_b32 v207, s46
    buffer_store_dwordx4 v[204:207], v200, s[48:51], 0 offen
    ''')

def kd_kernel(a, regions, launch_idx, sel, mult, base_ticks=10000):
    a('kd_kernel:')
    a(f'''
    s_cmp_ge_u32 s2, 1
    s_cbranch_scc1 L_endd
    s_load_dwordx2 s[4:5], s[0:1], 56
    s_load_dwordx2 s[8:9], s[0:1], 48
    s_waitcnt lgkmcnt(0)
    s_add_u32 s4, s4, {STAMP_OFF}
    s_addc_u32 s5, s5, 0
    s_mov_b32 s6, {65536*len(regions)}
    s_mov_b32 s7, 0x20000
    s_sub_u32 s8, s8, {512*launch_idx}
    s_subb_u32 s9, s9, 0
    s_mov_b32 s10, 256
    s_mov_b32 s11, 0x20000
    ''')
    for ri, (nwg, nw) in enumerate(regions):
        for k in range(4):
            a(f'v_mov_b32 v{10+2*k}, -1')
            a(f'v_mov_b32 v{11+2*k}, 0')
        a(f'''
        v_and_b32 v1, 7, v0
        v_min_u32 v1, {nw-1}, v1
        v_lshrrev_b32 v2, 3, v0
        s_mov_b32 s12, 0
        L_red{ri}:
        v_add_u32 v3, s12, v2
        v_min_u32 v3, {nwg-1}, v3
        v_lshl_add_u32 v3, v3, 3, v1
        v_lshlrev_b32 v3, 4, v3
        v_add_u32 v3, {ri*65536}, v3
        buffer_load_dwordx4 v[4:7], v3, s[4:7], 0 offen
        s_waitcnt vmcnt(0)
        ''')
        for k in range(4):
            a(f'v_min_u32 v{10+2*k}, v{10+2*k}, v{4+k}')
            a(f'v_max_u32 v{11+2*k}, v{11+2*k}, v{4+k}')
        a(f'''
        s_add_u32 s12, s12, 8
        s_cmp_lt_u32 s12, {nwg}
        s_cbranch_scc1 L_red{ri}
        ''')
        for j in range(8):
            d = 20 + ri * 8 + j
            a(f's_mov_b32 s{d}, {"-1" if j % 2 == 0 else "0"}')
        a(f's_mov_b32 s12, 0')
        a(f'L_lane{ri}:')
        for j in range(8):
            d = 20 + ri * 8 + j
            a(f'v_readlane_b32 s13, v{10+j}, s12')
            a('s_nop 1')
            a(f'{"s_min_u32" if j % 2 == 0 else "s_max_u32"} s{d}, s{d}, s13')
        a(f'''
        s_add_u32 s12, s12, 1
        s_cmp_lt_u32 s12, 64
        s_cbranch_scc1 L_lane{ri}
        ''')
    n = 8 * len(regions)
    for j in range(n):
        a(f's_sub_u32 s13, s{20+j}, s20')
        a(f'v_mov_b32 v4, s13')
        a(f'v_mov_b32 v5, {4*j}')
        a('buffer_store_dword v4, v5, s[8:11], 0 offen')
    a(f'''
    s_sub_u32 s13, s{20+sel[0]}, s{20+sel[1]}
    s_min_u32 s13, s13, 5000
    s_mul_i32 s13, s13, {mult}
    s_add_u32 s13, s13, {base_ticks}
    L_spin:
    s_memrealtime s[14:15]
    s_waitcnt lgkmcnt(0)
    s_sub_u32 s14, s14, s20
    s_cmp_lt_u32 s14, s13
    s_cbranch_scc1 L_spin
    L_endd:
    s_endpgm
    ''')

def kd_simple(a, base_ticks):
    a('kd_kernel:')
    a(f'''
    s_cmp_ge_u32 s2, 1
    s_cbranch_scc1 L_endd
    s_load_dwordx2 s[4:5], s[0:1], 56
    s_waitcnt lgkmcnt(0)
    s_add_u32 s4, s4, {STAMP_OFF}
    s_addc_u32 s5, s5, 0
    s_mov_b32 s6, 65536
    s_mov_b32 s7, 0x20000
    v_mov_b32 v3, 0
    buffer_load_dword v4, v3, s[4:7], 0 offen
    s_waitcnt vmcnt(0)
    v_readfirstlane_b32 s20, v4
    L_spin:
    s_memrealtime s[14:15]
    s_waitcnt lgkmcnt(0)
    s_sub_u32 s14, s14, s20
    s_cmp_lt_u32 s14, {base_ticks}
    s_cbranch_scc1 L_spin
    L_endd:
    s_endpgm
    ''')
```

```python
import sys, struct
sys.path.insert(0, 'gen')
from asmlib import Asm
import diag
DIAG = len(sys.argv) > 2
def st(a, k):
    if DIAG: diag.stamp(a, k)

def f32(x):
    return '0x%08x' % struct.unpack('<I', struct.pack('<f', x))[0]

NB = 2621440

def transpose4(a, base):
    for r in range(4):
        for c in range(r + 1, 4):
            a(f'v_swap_b32 v{base+4*r+c}, v{base+4*c+r}')

def kernel1(a):
    a('k1_kernel:')
    st(a, 0)
    a(f'''
    s_cmp_ge_u32 s2, 160
    s_cbranch_scc1 L_end1
    s_load_dwordx2 s[4:5], s[0:1], 0
    s_load_dwordx2 s[8:9], s[0:1], 56
    v_and_b32 v1, 15, v0
    v_bfe_u32 v2, v0, 4, 2
    v_lshrrev_b32 v3, 6, v0
    v_lshl_add_u32 v4, v2, 6, v1
    v_mul_u32_u24 v4, 10240, v4
    v_lshl_add_u32 v4, v3, 4, v4
    s_and_b32 s12, s2, 7
    s_lshr_b32 s13, s2, 3
    s_mul_i32 s12, s12, 1280
    s_lshl_b32 s13, s13, 6
    s_add_u32 s12, s12, s13
    s_add_u32 s13, s12, 163840
    s_add_u32 s14, s12, {2*163840}
    s_add_u32 s15, s12, {3*163840}
    s_mov_b32 s6, {NB}
    s_mov_b32 s7, 0x20000
    s_mov_b32 s10, {NB}
    s_mov_b32 s11, 0x20000
    s_waitcnt lgkmcnt(0)
    ''')
    for r in range(4):
        a(f'buffer_load_dwordx4 v[{16+4*r}:{19+4*r}], v4, s[4:7], s{12+r} offen')
    FRE, FIM, TC, TS, TN = 32, 36, 40, 44, 48
    a(f'''
    v_cvt_f32_u32 v5, v1
    v_cvt_f32_u32 v6, v2
    v_mul_f32 v5, {f32(1/16)}, v5
    v_mul_f32 v6, 4.0, v6
    v_mul_f32 v6, v6, v5
    v_add_f32 v7, v6, v5
    v_add_f32 v8, v7, v5
    v_add_f32 v9, v8, v5
    ''')
    for r in range(4):
        a(f'v_cos_f32 v10, v{6+r}')
        a(f'v_sin_f32 v11, v{6+r}')
        a(f'v_mul_f32 v12, {f32(1/16)}, v{6+r}')
        a(f'v_cvt_pk_bf16_f32 v{FRE+r}, v10, v11')
        a(f'v_cvt_pk_bf16_f32 v{FIM+r}, -v11, v10')
        a(f'v_cos_f32 v{TC+r}, v12')
        a(f'v_sin_f32 v{TS+r}, v12')
        a(f'v_sin_f32 v{TN+r}, -v12')
    a('s_waitcnt vmcnt(0)')
    st(a, 1)
    transpose4(a, 16)
    D = 52
    O = 84
    for p in range(4):
        a(f'v_mfma_f32_16x16x32_bf16 v[{D+8*p}:{D+8*p+3}], v[{16+4*p}:{19+4*p}], v[{FRE}:{FRE+3}], 0')
        a(f'v_mfma_f32_16x16x32_bf16 v[{D+8*p+4}:{D+8*p+7}], v[{16+4*p}:{19+4*p}], v[{FIM}:{FIM+3}], 0')
    for p in range(4):
        for i in range(4):
            ar, ai = D + 8*p + i, D + 8*p + 4 + i
            t = 8 + i
            a(f'v_mul_f32 v{t}, v{ar}, v{TC+i}')
            a(f'v_fmac_f32 v{t}, v{ai}, v{TS+i}')
            a(f'v_mul_f32 v{ai}, v{ai}, v{TC+i}')
            a(f'v_fmac_f32 v{ai}, v{ar}, v{TN+i}')
        for i in range(4):
            a(f'v_cvt_pk_bf16_f32 v{16+4*p+i}, v{8+i}, v{D+8*p+4+i}')
        a(f'v_mfma_f32_16x16x32_bf16 v[{D+8*p}:{D+8*p+3}], v[{FRE}:{FRE+3}], v[{16+4*p}:{19+4*p}], 0')
        a(f'v_mfma_f32_16x16x32_bf16 v[{D+8*p+4}:{D+8*p+7}], v[{FIM}:{FIM+3}], v[{16+4*p}:{19+4*p}], 0')
    for p in range(4):
        for i in range(4):
            a(f'v_cvt_pk_bf16_f32 v{O+4*i+p}, v{D+8*p+i}, v{D+8*p+4+i}')
    for i in range(4):
        a(f'buffer_store_dwordx4 v[{O+4*i}:{O+4*i+3}], v4, s[8:11], s{12+i} offen')
    st(a, 2)
    if DIAG: diag.stamp_store(a, 0, 8)
    a('L_end1:')
    a('s_endpgm')
    return 208 if DIAG else 100

def kernel2(a):
    a('k2_kernel:')
    st(a, 0)
    a(f'''
    s_cmp_ge_u32 s2, 258
    s_cbranch_scc1 L_end2
    s_load_dwordx2 s[4:5], s[0:1], 56
    s_load_dwordx2 s[8:9], s[0:1], 40
    v_and_b32 v1, 15, v0
    v_bfe_u32 v2, v0, 4, 2
    v_lshrrev_b32 v3, 6, v0
    v_mul_u32_u24 v5, 2560, v2
    v_lshl_add_u32 v4, v3, 8, v5
    v_lshl_add_u32 v4, v1, 4, v4
    v_readfirstlane_b32 s20, v3
    s_lshr_b32 s12, s2, 4
    s_lshl_b32 s12, s12, 3
    s_and_b32 s13, s2, 7
    s_or_b32 s12, s12, s13
    s_lshr_b32 s13, s2, 3
    s_cmp_ge_u32 s2, 256
    s_cselect_b32 s12, 128, s12
    s_cselect_b32 s13, s2, s13
    s_and_b32 s13, s13, 1
    s_sub_u32 s14, 256, s12
    s_and_b32 s14, s14, 255
    s_mul_i32 s15, s12, 10240
    s_mul_i32 s16, s14, 10240
    s_lshl_b32 s13, s13, 10
    s_add_u32 s13, s13, s12
    s_mov_b32 s6, {NB}
    s_mov_b32 s7, 0x20000
    s_mov_b32 s10, {NB}
    s_mov_b32 s11, 0x20000
    s_waitcnt lgkmcnt(0)
    buffer_load_dwordx4 v[16:19], v4, s[4:7], s15 offen
    buffer_load_dwordx4 v[20:23], v4, s[4:7], s16 offen
    buffer_load_dwordx4 v[24:27], v4, s[4:7], s15 offen offset:1280
    buffer_load_dwordx4 v[28:31], v4, s[4:7], s16 offen offset:1280
    ''')
    MA = 32
    a(f'''
    v_lshl_add_u32 v5, v3, 9, v5
    v_lshl_add_u32 v5, v1, 5, v5
    v_lshrrev_b32 v6, 2, v1
    v_lshl_add_u32 v6, v6, 8, s13
    v_cvt_f32_u32 v6, v6
    v_mul_f32 v6, {f32(1/2048)}, v6
    v_cvt_f32_u32 v7, v2
    v_add_f32 v7, v7, v7
    v_bfe_u32 v8, v0, 1, 1
    v_and_b32 v9, 1, v0
    v_add_u32 v9, v9, v8
    v_cvt_f32_u32 v9, v9
    v_mul_f32 v9, {f32(0.25)}, v9
    v_fma_f32 v9, v6, v7, v9
    v_add_f32 v10, v9, v6
    v_cos_f32 v11, v9
    v_sin_f32 v12, v9
    v_cos_f32 v13, v10
    v_sin_f32 v14, v10
    v_lshlrev_b32 v8, 4, v8
    v_lshrrev_b32 v8, v8, 0x80000000
    '''.replace('v_lshrrev_b32 v8, v8, 0x80000000', 'v_mov_b32 v15, 0x80000000\n v_lshrrev_b32 v8, v8, v15'))
    a(f'''
    v_mul_f32 v11, 0.5, v11
    v_mul_f32 v12, 0.5, v12
    v_mul_f32 v13, 0.5, v13
    v_mul_f32 v14, 0.5, v14
    v_cvt_pk_bf16_f32 v{MA}, v11, v12
    v_cvt_pk_bf16_f32 v{MA+2}, v13, v14
    v_xor_b32 v{MA+1}, v{MA}, v8
    v_xor_b32 v{MA+3}, v{MA+2}, v8
    s_cmp_eq_u32 s20, 4
    s_cbranch_scc1 L_skipc
    ''')
    BRE, BIM, TC, TS, FC = 36, 46, 56, 72, 88
    a(f'''
    v_bfe_u32 v6, v0, 5, 1
    v_and_b32 v7, 31, v0
    v_bfe_u32 v8, v0, 2, 1
    v_mul_u32_u24 v8, 10, v8
    v_and_b32 v9, 3, v0
    v_add_u32 v8, v8, v9
    v_bfe_u32 v9, v0, 3, 2
    v_lshl_add_u32 v8, v9, 2, v8
    v_cvt_f32_u32 v8, v8
    v_cvt_f32_u32 v9, v6
    v_cvt_f32_u32 v10, v7
    v_mul_f32 v11, {f32(1/20)}, v8
    v_mul_f32 v12, 0.5, v8
    v_mul_f32 v12, v12, v9
    ''')
    for r in range(10):
        if r > 0:
            a(f'v_fmamk_f32 v13, v11, {f32(float(r))}, v12')
        else:
            a('v_mov_b32 v13, v12')
        a('v_cos_f32 v14, v13')
        a('v_sin_f32 v15, v13')
        a(f'v_cvt_pk_bf16_f32 v{BRE+r}, v14, v15')
        a(f'v_cvt_pk_bf16_f32 v{BIM+r}, -v15, v14')
    a(f'''
    v_mul_f32 v11, {f32(1/640)}, v8
    v_mul_f32 v9, 4.0, v9
    v_mul_f32 v12, v11, v9
    v_mul_f32 v10, {f32(1/32)}, v10
    v_mul_f32 v9, v10, v9
    ''')
    for i in range(16):
        off = (i & 3) + 8 * (i >> 2)
        a(f'v_fmamk_f32 v13, v11, {f32(float(off))}, v12')
        a(f'v_fmamk_f32 v8, v10, {f32(float(off))}, v9')
        a(f'v_cos_f32 v{TC+i}, v13')
        a(f'v_sin_f32 v{TS+i}, v13')
        a('v_cos_f32 v14, v8')
        a('v_sin_f32 v15, v8')
        a(f'v_cvt_pk_bf16_f32 v{FC+i}, v14, v15')
    a(f'''
    v_mul_u32_u24 v8, 2560, v3
    v_mul_u32_u24 v9, 1280, v6
    v_add_u32 v8, v8, v9
    v_lshl_add_u32 v8, v7, 2, v8
    v_mul_u32_u24 v9, 40, v7
    v_mul_u32_u24 v10, 20, v6
    v_add_u32 v9, v9, v10
    v_sub_u32 v10, 1260, v9
    s_lshl_b32 s21, s20, 8
    s_add_u32 s21, s21, s13
    s_sub_u32 s22, 2048, s21
    s_and_b32 s22, s22, 2047
    s_mul_i32 s21, s21, 1280
    s_mul_i32 s22, s22, 1280
    L_skipc:
    s_waitcnt vmcnt(0)
    ''')
    st(a, 1)
    transpose4(a, 16)
    DA = 104
    for T in range(4):
        a(f'v_mfma_f32_16x16x32_bf16 v[{DA+4*T}:{DA+4*T+3}], v[{MA}:{MA+3}], v[{16+4*T}:{19+4*T}], 0')
    for T in range(4):
        for pi in range(2):
            a(f'v_cvt_pk_bf16_f32 v{16+2*T+pi}, v{DA+4*T+2*pi}, v{DA+4*T+2*pi+1}')
    a('''
    ds_write_b128 v5, v[16:19]
    ds_write_b128 v5, v[20:23] offset:16
    s_waitcnt lgkmcnt(0)
    s_cmp_eq_u32 s20, 4
    s_cbranch_scc1 L_end2
    s_barrier
    ds_read2_b32 v[16:17], v8 offset0:0 offset1:32
    ds_read2_b32 v[18:19], v8 offset0:64 offset1:96
    ds_read2_b32 v[20:21], v8 offset0:128 offset1:160
    ds_read2_b32 v[22:23], v8 offset0:192 offset1:224
    ds_read_b32 v24, v8 offset:1024
    ds_read_b32 v25, v8 offset:1152
    ''')
    DR, DI = 104, 120
    a('s_waitcnt lgkmcnt(4)')
    a(f'v_mfma_f32_32x32x16_bf16 v[{DR}:{DR+15}], v[16:19], v[{BRE}:{BRE+3}], 0')
    a(f'v_mfma_f32_32x32x16_bf16 v[{DI}:{DI+15}], v[16:19], v[{BIM}:{BIM+3}], 0')
    a('s_waitcnt lgkmcnt(2)')
    a(f'v_mfma_f32_32x32x16_bf16 v[{DR}:{DR+15}], v[20:23], v[{BRE+4}:{BRE+7}], v[{DR}:{DR+15}]')
    a(f'v_mfma_f32_32x32x16_bf16 v[{DI}:{DI+15}], v[20:23], v[{BIM+4}:{BIM+7}], v[{DI}:{DI+15}]')
    a('s_waitcnt lgkmcnt(0)')
    a(f'v_mfma_f32_32x32x8_bf16 v[{DR}:{DR+15}], v[24:25], v[{BRE+8}:{BRE+9}], v[{DR}:{DR+15}]')
    a(f'v_mfma_f32_32x32x8_bf16 v[{DI}:{DI+15}], v[24:25], v[{BIM+8}:{BIM+9}], v[{DI}:{DI+15}]')
    Y = 36
    for s in range(4):
        for r in range(4):
            i = 4 * s + r
            ar, ai, t = DR + i, DI + i, 12 + r
            a(f'v_mul_f32 v{t}, v{ar}, v{TC+i}')
            a(f'v_fmac_f32 v{t}, v{ai}, v{TS+i}')
            a(f'v_mul_f32 v{ai}, v{ai}, v{TC+i}')
            a(f'v_fma_f32 v{ai}, -v{ar}, v{TS+i}, v{ai}')
        for r in range(4):
            a(f'v_cvt_pk_bf16_f32 v{16+4*s+r}, v{12+r}, v{DI+4*s+r}')
        c = '0' if s == 0 else f'v[{Y}:{Y+15}]'
        a(f'v_mfma_f32_32x32x16_bf16 v[{Y}:{Y+15}], v[{16+4*s}:{19+4*s}], v[{FC+4*s}:{FC+4*s+3}], {c}')
    for j in range(5):
        a(f'v_cvt_pk_bf16_f32 v{56+j}, v{Y+2*j}, v{Y+2*j+1}')
    for j in range(5):
        a(f'v_cvt_pk_bf16_f32 v{64+j}, v{Y+10-2*j}, v{Y+9-2*j}')
    a('''
    buffer_store_dwordx4 v[56:59], v9, s[8:11], s21 offen
    buffer_store_dword v60, v9, s[8:11], s21 offen offset:16
    s_and_b32 s12, s12, 127
    s_cbranch_scc0 L_nomir
    buffer_store_dwordx4 v[64:67], v10, s[8:11], s22 offen
    buffer_store_dword v68, v10, s[8:11], s22 offen offset:16
    L_nomir:
    ''')
    st(a, 2)
    if DIAG: diag.stamp_store(a, 1, 4)
    a('L_end2:')
    a('s_endpgm')
    return 208 if DIAG else 136

def desc(name, nv):
    nv4 = (nv + 3) // 4 * 4
    return f'''.p2align 6
.amdhsa_kernel {name}
  .amdhsa_next_free_vgpr {nv}
  .amdhsa_next_free_sgpr 64
  .amdhsa_accum_offset {nv4}
  .amdhsa_group_segment_fixed_size 0
  .amdhsa_kernarg_size 64
  .amdhsa_user_sgpr_count 2
  .amdhsa_user_sgpr_kernarg_segment_ptr 1
  .amdhsa_system_sgpr_workgroup_id_x 1
  .amdhsa_float_denorm_mode_32 3
.end_amdhsa_kernel
'''

def main(out):
    hdr = '''; FNet spectral mixing via MFMA FFT (two launches)
; @launch kernel=k1_kernel grid=(160,1,1) block=(256,1,1) lds=0
; @launch kernel=k2_kernel grid=(258,1,1) block=(320,1,1) lds=10240
.amdgcn_target "amdgcn-amd-amdhsa--gfx950"
.text
'''
    a1 = Asm(); n1 = kernel1(a1); a1.pad(True)
    a2 = Asm(); n2 = kernel2(a2); a2.pad(True)
    s = hdr
    s += '.globl k1_kernel\n.p2align 8\n.type k1_kernel,@function\n' + a1.text()
    s += '.globl k2_kernel\n.p2align 8\n.type k2_kernel,@function\n' + a2.text()
    extra = ''
    if DIAG:
        sel = tuple(int(x) for x in sys.argv[2].split(','))
        ad = Asm()
        if len(sel) == 1: diag.kd_simple(ad, sel[0])
        else: diag.kd_kernel(ad, [(160, 4), (258, 4)], 0, sel[:2], sel[2])
        ad.pad()
        s += '.globl kd_kernel\n.p2align 8\n.type kd_kernel,@function\n' + ad.text()
        s = s.replace('lds=10240\n', 'lds=10240\n; @launch kernel=kd_kernel grid=(1,1,1) block=(64,1,1) lds=0\n')
        extra = desc('kd_kernel', 32)
    s += '.section .rodata,"a"\n' + desc('k1_kernel', n1) + desc('k2_kernel', n2) + extra
    open(out, 'w').write(s)

main(sys.argv[1])
```

```python
STAMP_OFF = 8 << 20

def stamp(a, k):
    a(f's_memrealtime s[{40+2*k}:{41+2*k}]')

def stamp_store(a, region, ws_lo, wg='s2', nwave_log=3, tid='v0'):
    a(f'''
    s_waitcnt vmcnt(0) lgkmcnt(0)
    s_memrealtime s[46:47]
    s_add_u32 s48, s{ws_lo}, {STAMP_OFF + region * 65536}
    s_addc_u32 s49, s{ws_lo+1}, 0
    s_mov_b32 s50, 65536
    s_mov_b32 s51, 0x20000
    v_lshrrev_b32 v130, 6, {tid}
    s_lshl_b32 s52, {wg}, {nwave_log}
    v_add_u32 v130, s52, v130
    v_lshlrev_b32 v130, 4, v130
    s_waitcnt lgkmcnt(0)
    v_mov_b32 v134, s40
    v_mov_b32 v135, s42
    v_mov_b32 v136, s44
    v_mov_b32 v137, s46
    buffer_store_dwordx4 v[134:137], v130, s[48:51], 0 offen
    ''')

def kd_kernel(a, regions, launch_idx, sel, mult, base_ticks=10000):
    a('kd_kernel:')
    a(f'''
    s_cmp_ge_u32 s2, 1
    s_cbranch_scc1 L_endd
    s_load_dwordx2 s[4:5], s[0:1], 56
    s_load_dwordx2 s[8:9], s[0:1], 48
    s_waitcnt lgkmcnt(0)
    s_add_u32 s4, s4, {STAMP_OFF}
    s_addc_u32 s5, s5, 0
    s_mov_b32 s6, {65536*len(regions)}
    s_mov_b32 s7, 0x20000
    s_sub_u32 s8, s8, {512*launch_idx}
    s_subb_u32 s9, s9, 0
    s_mov_b32 s10, 256
    s_mov_b32 s11, 0x20000
    ''')
    for ri, (nwg, nw) in enumerate(regions):
        for k in range(4):
            a(f'v_mov_b32 v{10+2*k}, -1')
            a(f'v_mov_b32 v{11+2*k}, 0')
        a(f'''
        v_and_b32 v1, 7, v0
        v_min_u32 v1, {nw-1}, v1
        v_lshrrev_b32 v2, 3, v0
        s_mov_b32 s12, 0
        L_red{ri}:
        v_add_u32 v3, s12, v2
        v_min_u32 v3, {nwg-1}, v3
        v_lshl_add_u32 v3, v3, 3, v1
        v_lshlrev_b32 v3, 4, v3
        v_add_u32 v3, {ri*65536}, v3
        buffer_load_dwordx4 v[4:7], v3, s[4:7], 0 offen
        s_waitcnt vmcnt(0)
        ''')
        for k in range(4):
            a(f'v_min_u32 v{10+2*k}, v{10+2*k}, v{4+k}')
            a(f'v_max_u32 v{11+2*k}, v{11+2*k}, v{4+k}')
        a(f'''
        s_add_u32 s12, s12, 8
        s_cmp_lt_u32 s12, {nwg}
        s_cbranch_scc1 L_red{ri}
        ''')
        for j in range(8):
            d = 20 + ri * 8 + j
            a(f's_mov_b32 s{d}, {"-1" if j % 2 == 0 else "0"}')
        a(f's_mov_b32 s12, 0')
        a(f'L_lane{ri}:')
        for j in range(8):
            d = 20 + ri * 8 + j
            a(f'v_readlane_b32 s13, v{10+j}, s12')
            a('s_nop 1')
            a(f'{"s_min_u32" if j % 2 == 0 else "s_max_u32"} s{d}, s{d}, s13')
        a(f'''
        s_add_u32 s12, s12, 1
        s_cmp_lt_u32 s12, 64
        s_cbranch_scc1 L_lane{ri}
        ''')
    n = 8 * len(regions)
    for j in range(n):
        a(f's_sub_u32 s13, s{20+j}, s20')
        a(f'v_mov_b32 v4, s13')
        a(f'v_mov_b32 v5, {4*j}')
        a('buffer_store_dword v4, v5, s[8:11], 0 offen')
    a(f'''
    s_sub_u32 s13, s{20+sel[0]}, s{20+sel[1]}
    s_min_u32 s13, s13, 5000
    s_mul_i32 s13, s13, {mult}
    s_add_u32 s13, s13, {base_ticks}
    L_spin:
    s_memrealtime s[14:15]
    s_waitcnt lgkmcnt(0)
    s_sub_u32 s14, s14, s20
    s_cmp_lt_u32 s14, s13
    s_cbranch_scc1 L_spin
    L_endd:
    s_endpgm
    ''')

def kd_simple(a, base_ticks):
    a('kd_kernel:')
    a(f'''
    s_cmp_ge_u32 s2, 1
    s_cbranch_scc1 L_endd
    s_load_dwordx2 s[4:5], s[0:1], 56
    s_waitcnt lgkmcnt(0)
    s_add_u32 s4, s4, {STAMP_OFF}
    s_addc_u32 s5, s5, 0
    s_mov_b32 s6, 65536
    s_mov_b32 s7, 0x20000
    v_mov_b32 v3, 0
    buffer_load_dword v4, v3, s[4:7], 0 offen
    s_waitcnt vmcnt(0)
    v_readfirstlane_b32 s20, v4
    L_spin:
    s_memrealtime s[14:15]
    s_waitcnt lgkmcnt(0)
    s_sub_u32 s14, s14, s20
    s_cmp_lt_u32 s14, {base_ticks}
    s_cbranch_scc1 L_spin
    L_endd:
    s_endpgm
    ''')
```

```python
import sys, struct
sys.path.insert(0, 'gen')
from asmlib import Asm
import diag
OPT = dict(a.split('=') for a in sys.argv[2:])
DIAG = 'st' in OPT
USTR = int(OPT.get('ustr', 10240))
def st(a, k):
    if DIAG: diag.stamp(a, k)

def f32(x):
    return '0x%08x' % struct.unpack('<I', struct.pack('<f', x))[0]

NB = 2621440
UB = USTR * 256

def transpose4(a, base):
    for r in range(4):
        for c in range(r + 1, 4):
            a(f'v_swap_b32 v{base+4*r+c}, v{base+4*c+r}')

def kernel1(a):
    a('k1_kernel:')
    st(a, 0)
    a(f'''
    s_cmp_ge_u32 s2, 160
    s_cbranch_scc1 L_end1
    s_load_dwordx2 s[4:5], s[0:1], 0
    s_load_dwordx2 s[8:9], s[0:1], 56
    v_and_b32 v1, 15, v0
    v_bfe_u32 v2, v0, 4, 2
    v_lshrrev_b32 v3, 6, v0
    v_lshl_add_u32 v4, v2, 4, v3
    v_mul_u32_u24 v4, 40960, v4
    v_lshl_add_u32 v4, v1, 2, v4
    v_add_u32 v5, 10240, v4
    v_add_u32 v6, 20480, v4
    v_add_u32 v7, 30720, v4
    s_and_b32 s12, s2, 7
    s_lshr_b32 s13, s2, 3
    s_mul_i32 s12, s12, 1280
    s_lshl_b32 s13, s13, 6
    s_add_u32 s12, s12, s13
    s_add_u32 s13, s12, 163840
    s_add_u32 s14, s12, {2*163840}
    s_add_u32 s15, s12, {3*163840}
    s_mov_b32 s6, {NB}
    s_mov_b32 s7, 0x20000
    s_mov_b32 s10, {UB}
    s_mov_b32 s11, 0x20000
    s_waitcnt lgkmcnt(0)
    ''')
    X = 16
    for j in range(4):
        for r in range(4):
            a(f'buffer_load_dword v{X+4*j+r}, v{4+j}, s[4:7], s{12+r} offen')
    M1 = 32
    F2 = 64
    a(f'''
    v_cvt_f32_u32 v8, v1
    v_lshl_add_u32 v9, v2, 4, v3
    v_cvt_f32_u32 v9, v9
    v_mul_f32 v8, {f32(1/256)}, v8
    v_mul_f32 v9, 4.0, v9
    v_mul_f32 v9, v9, v8
    ''')
    for j in range(4):
        for r in range(4):
            off = 16 * r + j
            if off: a(f'v_fmamk_f32 v10, v8, {f32(float(off))}, v9')
            else: a('v_mov_b32 v10, v9')
            a('v_cos_f32 v11, v10')
            a('v_sin_f32 v12, v10')
            a(f'v_cvt_pk_bf16_f32 v{M1+8*j+r}, v11, v12')
            a(f'v_cvt_pk_bf16_f32 v{M1+8*j+4+r}, -v12, v11')
    a(f'''
    v_cvt_f32_u32 v9, v2
    v_mul_f32 v8, {f32(16.0)}, v8
    v_mul_f32 v9, 4.0, v9
    v_mul_f32 v9, v9, v8
    ''')
    for r in range(4):
        if r: a('v_add_f32 v9, v9, v8')
        a('v_cos_f32 v11, v9')
        a('v_sin_f32 v12, v9')
        a(f'v_cvt_pk_bf16_f32 v{F2+r}, v11, v12')
        a(f'v_cvt_pk_bf16_f32 v{F2+4+r}, -v12, v11')
    a(f'''
    v_lshrrev_b32 v8, 2, v1
    v_and_b32 v9, 3, v1
    v_and_b32 v10, 1, v8
    v_xor_b32 v10, v10, v2
    v_lshl_add_u32 v13, v10, 2, v9
    v_lshl_add_u32 v10, v8, 4, v3
    v_lshl_add_u32 v13, v10, 4, v13
    v_lshlrev_b32 v13, 4, v13
    v_and_b32 v10, 1, v3
    v_xor_b32 v10, v10, v9
    v_lshl_add_u32 v14, v10, 2, v8
    v_lshl_add_u32 v10, v3, 4, v2
    v_lshl_add_u32 v14, v10, 4, v14
    v_lshlrev_b32 v14, 4, v14
    v_lshl_add_u32 v10, v2, 4, v3
    v_lshl_add_u32 v10, v10, 2, v8
    v_mul_u32_u24 v15, {USTR}, v10
    v_lshl_add_u32 v15, v9, 4, v15
    s_add_u32 s13, s12, {16*USTR}
    s_add_u32 s14, s12, {32*USTR}
    s_add_u32 s15, s12, {48*USTR}
    ''')
    D = 72
    for j in range(4):
        a(f's_waitcnt vmcnt({12-4*j})')
        if j == 3: st(a, 1)
        a(f'v_mfma_f32_16x16x32_bf16 v[{D+8*j}:{D+8*j+3}], v[{X+4*j}:{X+4*j+3}], v[{M1+8*j}:{M1+8*j+3}], 0')
        a(f'v_mfma_f32_16x16x32_bf16 v[{D+8*j+4}:{D+8*j+7}], v[{X+4*j}:{X+4*j+3}], v[{M1+8*j+4}:{M1+8*j+7}], 0')
    P = 32
    for j in range(4):
        for i in range(4):
            a(f'v_cvt_pk_bf16_f32 v{P+4*i+j}, v{D+8*j+i}, v{D+8*j+4+i}')
    for i in range(4):
        a(f'ds_write_b128 v13, v[{P+4*i}:{P+4*i+3}] offset:{1024*i}')
    a('s_waitcnt lgkmcnt(0)')
    a('s_barrier')
    for T in range(4):
        a(f'ds_read_b128 v[{X+4*T}:{X+4*T+3}], v14 offset:{1024*T}')
    for T in range(4):
        a(f's_waitcnt lgkmcnt({3-T})')
        a(f'v_mfma_f32_16x16x32_bf16 v[{D+8*T}:{D+8*T+3}], v[{F2}:{F2+3}], v[{X+4*T}:{X+4*T+3}], 0')
        a(f'v_mfma_f32_16x16x32_bf16 v[{D+8*T+4}:{D+8*T+7}], v[{F2+4}:{F2+7}], v[{X+4*T}:{X+4*T+3}], 0')
    for T in range(3):
        for i in range(4):
            a(f'v_cvt_pk_bf16_f32 v{P+4*i+T}, v{D+8*T+i}, v{D+8*T+4+i}')
    for i in range(4):
        a(f'v_cvt_pk_bf16_f32 v{P+4*i+3}, v{D+24+i}, v{D+28+i}')
        a(f'buffer_store_dwordx4 v[{P+4*i}:{P+4*i+3}], v15, s[8:11], s{12+i} offen' + OPT.get('sflag', '').replace('+', ' '))
    st(a, 2)
    if DIAG: diag.stamp_store(a, 0, 8)
    a('L_end1:')
    a('s_endpgm')
    return 140 if DIAG else 104

def kernel2(a):
    a('k2_kernel:')
    st(a, 0)
    a(f'''
    s_cmp_ge_u32 s2, 256
    s_cbranch_scc1 L_end2
    s_load_dwordx2 s[4:5], s[0:1], 56
    s_load_dwordx2 s[8:9], s[0:1], 40
    v_and_b32 v1, 15, v0
    v_bfe_u32 v2, v0, 4, 2
    v_lshrrev_b32 v3, 6, v0
    v_mul_u32_u24 v5, 2560, v2
    v_lshl_add_u32 v4, v3, 8, v5
    v_lshl_add_u32 v4, v1, 4, v4
    v_readfirstlane_b32 s20, v3
    s_lshr_b32 s12, s2, 4
    s_lshl_b32 s12, s12, 3
    s_and_b32 s13, s2, 7
    s_or_b32 s12, s12, s13
    s_and_b32 s13, s2, 8
    s_lshl_b32 s13, s13, 7
    s_cmp_eq_u32 s2, 8
    s_cselect_b32 s12, 128, s12
    s_cselect_b32 s13, 0, s13
    s_sub_u32 s14, 256, s12
    s_and_b32 s14, s14, 255
    s_mul_i32 s15, s12, {USTR}
    s_mul_i32 s16, s14, {USTR}
    s_add_u32 s13, s13, s12
    s_mov_b32 s6, {UB}
    s_mov_b32 s7, 0x20000
    s_mov_b32 s10, {NB}
    s_mov_b32 s11, 0x20000
    s_waitcnt lgkmcnt(0)
    buffer_load_dwordx4 v[16:19], v4, s[4:7], s15 offen
    buffer_load_dwordx4 v[20:23], v4, s[4:7], s16 offen
    buffer_load_dwordx4 v[24:27], v4, s[4:7], s15 offen offset:1280
    buffer_load_dwordx4 v[28:31], v4, s[4:7], s16 offen offset:1280
    ''')
    MA = 32
    a(f'''
    v_lshl_add_u32 v5, v3, 9, v5
    v_lshl_add_u32 v5, v1, 5, v5
    v_lshrrev_b32 v6, 2, v1
    v_and_b32 v9, 1, v0
    s_cmp_eq_u32 s2, 0
    s_cselect_b32 s14, 1, 99
    v_and_b32 v8, 13, v1
    v_cmp_eq_u32 vcc, s14, v8
    v_cndmask_b32 v6, v6, 4, vcc
    v_cndmask_b32 v9, v9, 0, vcc
    v_lshl_add_u32 v6, v6, 8, s13
    v_cvt_f32_u32 v6, v6
    v_mul_f32 v6, {f32(1/2048)}, v6
    v_cvt_f32_u32 v7, v2
    v_add_f32 v7, v7, v7
    v_bfe_u32 v8, v0, 1, 1
    v_add_u32 v9, v9, v8
    v_cvt_f32_u32 v9, v9
    v_mul_f32 v9, {f32(0.25)}, v9
    v_fma_f32 v9, v6, v7, v9
    v_add_f32 v10, v9, v6
    v_cos_f32 v11, v9
    v_sin_f32 v12, v9
    v_cos_f32 v13, v10
    v_sin_f32 v14, v10
    v_lshlrev_b32 v8, 4, v8
    v_mov_b32 v15, 0x80000000
    v_lshrrev_b32 v8, v8, v15
    v_mul_f32 v11, 0.5, v11
    v_mul_f32 v12, 0.5, v12
    v_mul_f32 v13, 0.5, v13
    v_mul_f32 v14, 0.5, v14
    v_cvt_pk_bf16_f32 v{MA}, v11, v12
    v_cvt_pk_bf16_f32 v{MA+2}, v13, v14
    v_xor_b32 v{MA+1}, v{MA}, v8
    v_xor_b32 v{MA+3}, v{MA+2}, v8
    s_cmp_eq_u32 s20, 4
    s_cselect_b32 s23, s2, 0
    s_cmp_lg_u32 s23, 0
    s_cbranch_scc1 L_skipc
    ''')
    BRE, BIM, TC, TS, FC = 36, 46, 56, 72, 88
    a(f'''
    v_bfe_u32 v6, v0, 5, 1
    v_and_b32 v7, 31, v0
    v_bfe_u32 v8, v0, 2, 1
    v_mul_u32_u24 v8, 10, v8
    v_and_b32 v9, 3, v0
    v_add_u32 v8, v8, v9
    v_bfe_u32 v9, v0, 3, 2
    v_lshl_add_u32 v8, v9, 2, v8
    v_cvt_f32_u32 v8, v8
    v_cvt_f32_u32 v9, v6
    v_cvt_f32_u32 v10, v7
    v_mul_f32 v11, {f32(1/20)}, v8
    v_mul_f32 v12, 0.5, v8
    v_mul_f32 v12, v12, v9
    ''')
    for r in range(10):
        if r > 0:
            a(f'v_fmamk_f32 v13, v11, {f32(float(r))}, v12')
        else:
            a('v_mov_b32 v13, v12')
        a('v_cos_f32 v14, v13')
        a('v_sin_f32 v15, v13')
        a(f'v_cvt_pk_bf16_f32 v{BRE+r}, v14, v15')
        a(f'v_cvt_pk_bf16_f32 v{BIM+r}, -v15, v14')
    a(f'''
    v_mul_f32 v11, {f32(1/640)}, v8
    v_mul_f32 v9, 4.0, v9
    v_mul_f32 v12, v11, v9
    v_mul_f32 v10, {f32(1/32)}, v10
    v_mul_f32 v9, v10, v9
    ''')
    for i in range(16):
        off = (i & 3) + 8 * (i >> 2)
        a(f'v_fmamk_f32 v13, v11, {f32(float(off))}, v12')
        a(f'v_fmamk_f32 v8, v10, {f32(float(off))}, v9')
        a(f'v_cos_f32 v{TC+i}, v13')
        a(f'v_sin_f32 v{TS+i}, v13')
        a('v_cos_f32 v14, v8')
        a('v_sin_f32 v15, v8')
        a(f'v_cvt_pk_bf16_f32 v{FC+i}, v14, v15')
    a(f'''
    v_and_b32 v8, 3, v3
    v_mul_u32_u24 v8, 2560, v8
    v_mul_u32_u24 v9, 1280, v6
    v_add_u32 v8, v8, v9
    v_lshl_add_u32 v8, v7, 2, v8
    v_mul_u32_u24 v9, 40, v7
    v_mul_u32_u24 v10, 20, v6
    v_add_u32 v9, v9, v10
    v_sub_u32 v10, 1260, v9
    s_lshl_b32 s21, s20, 8
    s_add_u32 s21, s21, s13
    s_and_b32 s24, s21, 1023
    s_sub_u32 s22, 2048, s21
    s_mul_i32 s21, s21, 1280
    s_mul_i32 s22, s22, 1280
    s_cmp_lg_u32 s24, 0
    s_cbranch_scc1 L_skipc
    s_lshl_b32 s25, s20, 2
    ''')
    for r in range(20):
        a(f'v_and_b32 v{BRE+r}, 0xffff, v{BRE+r}')
        a(f'v_lshlrev_b32 v{BRE+r}, s25, v{BRE+r}')
    a('''
    L_skipc:
    s_waitcnt vmcnt(0)
    ''')
    st(a, 1)
    transpose4(a, 16)
    DA = 104
    for T in range(4):
        a(f'v_mfma_f32_16x16x32_bf16 v[{DA+4*T}:{DA+4*T+3}], v[{MA}:{MA+3}], v[{16+4*T}:{19+4*T}], 0')
    for T in range(4):
        for pi in range(2):
            a(f'v_cvt_pk_bf16_f32 v{16+2*T+pi}, v{DA+4*T+2*pi}, v{DA+4*T+2*pi+1}')
    a('''
    ds_write_b128 v5, v[16:19]
    ds_write_b128 v5, v[20:23] offset:16
    s_waitcnt lgkmcnt(0)
    s_cmp_lg_u32 s23, 0
    s_cbranch_scc1 L_end2
    s_barrier
    ds_read2_b32 v[16:17], v8 offset0:0 offset1:32
    ds_read2_b32 v[18:19], v8 offset0:64 offset1:96
    ds_read2_b32 v[20:21], v8 offset0:128 offset1:160
    ds_read2_b32 v[22:23], v8 offset0:192 offset1:224
    ds_read_b32 v24, v8 offset:1024
    ds_read_b32 v25, v8 offset:1152
    ''')
    DR, DI = 104, 120
    a('s_waitcnt lgkmcnt(4)')
    a(f'v_mfma_f32_32x32x16_bf16 v[{DR}:{DR+15}], v[16:19], v[{BRE}:{BRE+3}], 0')
    a(f'v_mfma_f32_32x32x16_bf16 v[{DI}:{DI+15}], v[16:19], v[{BIM}:{BIM+3}], 0')
    a('s_waitcnt lgkmcnt(2)')
    a(f'v_mfma_f32_32x32x16_bf16 v[{DR}:{DR+15}], v[20:23], v[{BRE+4}:{BRE+7}], v[{DR}:{DR+15}]')
    a(f'v_mfma_f32_32x32x16_bf16 v[{DI}:{DI+15}], v[20:23], v[{BIM+4}:{BIM+7}], v[{DI}:{DI+15}]')
    a('s_waitcnt lgkmcnt(0)')
    a(f'v_mfma_f32_32x32x8_bf16 v[{DR}:{DR+15}], v[24:25], v[{BRE+8}:{BRE+9}], v[{DR}:{DR+15}]')
    a(f'v_mfma_f32_32x32x8_bf16 v[{DI}:{DI+15}], v[24:25], v[{BIM+8}:{BIM+9}], v[{DI}:{DI+15}]')
    Y = 36
    for s in range(4):
        for r in range(4):
            i = 4 * s + r
            ar, ai, t = DR + i, DI + i, 12 + r
            a(f'v_mul_f32 v{t}, v{ar}, v{TC+i}')
            a(f'v_fmac_f32 v{t}, v{ai}, v{TS+i}')
            a(f'v_mul_f32 v{ai}, v{ai}, v{TC+i}')
            a(f'v_fma_f32 v{ai}, -v{ar}, v{TS+i}, v{ai}')
        for r in range(4):
            a(f'v_cvt_pk_bf16_f32 v{16+4*s+r}, v{12+r}, v{DI+4*s+r}')
        c = '0' if s == 0 else f'v[{Y}:{Y+15}]'
        a(f'v_mfma_f32_32x32x16_bf16 v[{Y}:{Y+15}], v[{16+4*s}:{19+4*s}], v[{FC+4*s}:{FC+4*s+3}], {c}')
    for j in range(5):
        a(f'v_cvt_pk_bf16_f32 v{56+j}, v{Y+2*j}, v{Y+2*j+1}')
    for j in range(5):
        a(f'v_cvt_pk_bf16_f32 v{64+j}, v{Y+10-2*j}, v{Y+9-2*j}')
    a('''
    buffer_store_dwordx4 v[56:59], v9, s[8:11], s21 offen
    buffer_store_dword v60, v9, s[8:11], s21 offen offset:16
    s_cmp_eq_u32 s24, 0
    s_cbranch_scc1 L_nomir
    buffer_store_dwordx4 v[64:67], v10, s[8:11], s22 offen
    buffer_store_dword v68, v10, s[8:11], s22 offen offset:16
    L_nomir:
    ''')
    st(a, 2)
    if DIAG: diag.stamp_store(a, 1, 4)
    a('L_end2:')
    a('s_endpgm')
    return 140 if DIAG else 136

def desc(name, nv):
    nv4 = (nv + 3) // 4 * 4
    return f'''.p2align 6
.amdhsa_kernel {name}
  .amdhsa_next_free_vgpr {nv}
  .amdhsa_next_free_sgpr 64
  .amdhsa_accum_offset {nv4}
  .amdhsa_group_segment_fixed_size 0
  .amdhsa_kernarg_size 64
  .amdhsa_user_sgpr_count 2
  .amdhsa_user_sgpr_kernarg_segment_ptr 1
  .amdhsa_system_sgpr_workgroup_id_x 1
  .amdhsa_float_denorm_mode_32 3
.end_amdhsa_kernel
'''

def main(out):
    hdr = '''; FNet spectral mixing via MFMA FFT (two launches)
; @launch kernel=k1_kernel grid=(160,1,1) block=(256,1,1) lds=16384
; @launch kernel=k2_kernel grid=(256,1,1) block=(320,1,1) lds=10240
.amdgcn_target "amdgcn-amd-amdhsa--gfx950"
.text
'''
    a1 = Asm(); n1 = kernel1(a1); a1.pad(True)
    a2 = Asm(); n2 = kernel2(a2); a2.pad(True)
    s = hdr
    s += '.globl k1_kernel\n.p2align 8\n.type k1_kernel,@function\n' + a1.text()
    s += '.globl k2_kernel\n.p2align 8\n.type k2_kernel,@function\n' + a2.text()
    s += '.section .rodata,"a"\n' + desc('k1_kernel', n1) + desc('k2_kernel', n2)
    open(out, 'w').write(s)

main(sys.argv[1])
```

```python
STAMP_OFF = 8 << 20
SB = 64
NST = 8

def stamp(a, k, clk='s_memrealtime'):
    a(f'{clk} s[{SB+2*k}:{SB+2*k+1}]')

def init(a):
    for k in range(NST):
        a(f's_mov_b32 s{SB+2*k}, 0')

def stamp_store(a, region, ws_lo, wg='s2', tid='v0', vb=130, last=7):
    a(f'''
    s_waitcnt vmcnt(0) lgkmcnt(0)
    s_memrealtime s[{SB+2*last}:{SB+2*last+1}]
    s_add_u32 s80, s{ws_lo}, {STAMP_OFF + region * 131072}
    s_addc_u32 s81, s{ws_lo+1}, 0
    s_mov_b32 s82, 131072
    s_mov_b32 s83, 0x20000
    v_lshrrev_b32 v{vb}, 6, {tid}
    s_lshl_b32 s84, {wg}, 4
    v_add_u32 v{vb}, s84, v{vb}
    v_lshlrev_b32 v{vb}, 5, v{vb}
    s_waitcnt lgkmcnt(0)
    ''')
    for k in range(NST):
        a(f'v_mov_b32 v{vb+2+k}, s{SB+2*k}')
    a(f'buffer_store_dwordx4 v[{vb+2}:{vb+5}], v{vb}, s[80:83], 0 offen')
    a(f'buffer_store_dwordx4 v[{vb+6}:{vb+9}], v{vb}, s[80:83], 0 offen offset:16')

def kd_kernel(a, r0, view, k, ismax, mult, base=3000, raw=False):
    a('kd_kernel:')
    a(f'''
    s_cmp_ge_u32 s2, 1
    s_cbranch_scc1 L_endd
    s_load_dwordx2 s[4:5], s[0:1], 56
    s_load_dwordx2 s[8:9], s[0:1], 48
    s_waitcnt lgkmcnt(0)
    s_add_u32 s4, s4, {STAMP_OFF}
    s_addc_u32 s5, s5, 0
    s_mov_b32 s6, {131072*2}
    s_mov_b32 s7, 0x20000
    s_mov_b32 s10, 256
    s_mov_b32 s11, 0x20000
    ''')
    reg = 10
    lists = []
    for (ri, g0, g1, w0, w1), kk in ((r0, 0), (view, k)):
        regs = []
        for c in range(4):
            a(f'v_add_u32 v1, {g0 + 64*c}, v0')
            a(f'v_min_u32 v1, {g1-1}, v1')
            a(f'v_lshlrev_b32 v1, 9, v1')
            a(f'v_add_u32 v1, {ri*131072}, v1')
            for w in range(w0, w1):
                a(f'buffer_load_dword v{reg}, v1, s[4:7], 0 offen offset:{w*32+kk*4}')
                regs.append(reg); reg += 1
        lists.append(regs)
    a('s_waitcnt vmcnt(0)')
    for regs, op in zip(lists, ('v_min_u32', 'v_max_u32' if ismax else 'v_min_u32')):
        for r in regs[1:]:
            a(f'{op} v{regs[0]}, v{regs[0]}, v{r}')
    a(f'''
    s_mov_b32 s20, -1
    s_mov_b32 s21, {0 if ismax else -1}
    s_mov_b32 s12, 0
    L_lane:
    v_readlane_b32 s13, v{lists[0][0]}, s12
    v_readlane_b32 s14, v{lists[1][0]}, s12
    s_nop 1
    s_min_u32 s20, s20, s13
    {'s_max_u32' if ismax else 's_min_u32'} s21, s21, s14
    s_add_u32 s12, s12, 1
    s_cmp_lt_u32 s12, 64
    s_cbranch_scc1 L_lane
    {'s_mov_b32 s13, s21' if raw else 's_sub_u32 s13, s21, s20'}
    v_mov_b32 v4, s13
    v_mov_b32 v5, 0
    buffer_store_dword v4, v5, s[8:11], 0 offen
    s_min_u32 s13, s13, 3000
    s_mul_i32 s13, s13, {mult}
    s_add_u32 s13, s13, {base}
    L_spin:
    s_memrealtime s[14:15]
    s_waitcnt lgkmcnt(0)
    s_sub_u32 s14, s14, s20
    s_cmp_lt_u32 s14, s13
    s_cbranch_scc1 L_spin
    L_endd:
    s_endpgm
    ''')
```

```python
import sys, re
sys.path.insert(0, 'gen')
from asmlib import Asm
import diag
src = open(sys.argv[1]).read()
r0 = tuple(int(x) for x in sys.argv[3].split(','))
view = tuple(int(x) for x in sys.argv[4].split(','))
a = Asm(); diag.kd_kernel(a, r0, view, int(sys.argv[5]), sys.argv[6] == 'max', int(sys.argv[7]), raw=len(sys.argv) > 8); a.pad()
KN = 'standalone__spectral_fnet__prompt_kernel'
src = re.sub(r'; @launch grid', f'; @launch kernel={KN} grid', src)
lines = src.split('\n')
last = max(i for i, l in enumerate(lines) if l.startswith('; @launch'))
lines.insert(last + 1, '; @launch kernel=kd_kernel grid=(1,1,1) block=(64,1,1) lds=0')
src = '\n'.join(lines)
code = '.globl kd_kernel\n.p2align 8\n.type kd_kernel,@function\n' + a.text()
src = src.replace('.section .rodata,"a"\n', code + '.section .rodata,"a"\n', 1)
src += '''.p2align 6
.amdhsa_kernel kd_kernel
  .amdhsa_next_free_vgpr 64
  .amdhsa_next_free_sgpr 32
  .amdhsa_accum_offset 64
  .amdhsa_group_segment_fixed_size 0
  .amdhsa_kernarg_size 64
  .amdhsa_user_sgpr_count 2
  .amdhsa_user_sgpr_kernarg_segment_ptr 1
  .amdhsa_system_sgpr_workgroup_id_x 1
.end_amdhsa_kernel
'''
open(sys.argv[2], 'w').write(src)
```

```python
import sys, struct, math
sys.path.insert(0, 'gen')
from asmlib import Asm
import diag
OPT = dict(a.split('=') for a in sys.argv[2:])
DIAG = 'st' in OPT
PK = int(OPT.get('pk', 1))
SLEEP = int(OPT.get('sleep', 2))
RSLEEP = int(OPT.get('rsleep', 2))
BOUND = int(OPT.get('bound', 0))
PAIR = int(OPT.get('pair', 1))
PRIO = int(OPT.get('prio', 1))
def st(a, k):
    if DIAG: diag.stamp(a, k)
def f32(x):
    return '0x%08x' % struct.unpack('<I', struct.pack('<f', x))[0]

NB = 2621440
NPROD = 216
if PAIR:
    RS = 27 * 128; LS = 8 * RS; SEG = 128; HB = 64
else:
    RS = 28 * 64; HB = 8 * RS; LS = 2 * HB; SEG = 64
HT = 128 * LS
GO = HT + 64 * 128
NGO = int(OPT.get('ngo', 8))
EO = GO + 64 * 128
UB = EO + 128
THR = int(OPT.get('thr', 180))
MASTER = 255
TAGC = 0x9E3779B9
KN = 'standalone__spectral_fnet__prompt_kernel'
VS = 2592
LDS_C = 16384
LDS_TOTAL = 16384 + 18 * 1024
BRE, BIM, TC, TS, FC = 24, 36, 48, 64, 80
DR, DI = 96, 112
G = 8
MA = DI + 8

def kernel(a):
    def bounded(lbl):
        if BOUND:
            a(f'''s_add_u32 s33, s33, 1
            s_cmp_lt_u32 s33, {BOUND}
            s_cbranch_scc1 {lbl}''')
        else:
            a(f's_branch {lbl}')
    a(f'{KN}:')
    if DIAG: diag.init(a)
    st(a, 0)
    X = G
    U8, U9 = 126, 127
    a(f'''
    s_load_dwordx2 s[4:5], s[0:1], 0
    s_load_dwordx2 s[16:17], s[0:1], 56
    s_load_dwordx2 s[8:9], s[0:1], 40
    v_lshrrev_b32 v3, 6, v0
    v_bfe_u32 v2, v0, 4, 2
    v_readfirstlane_b32 s20, v3
    v_and_b32 v{U8}, 3, v0
    v_bfe_u32 v{U9}, v0, 2, 2
    v_lshl_add_u32 v4, v2, 4, v3
    v_mul_u32_u24 v4, 40960, v4
    v_min_u32 v5, 2, v{U8}
    v_mad_u32_u24 v5, v{U9}, 3, v5
    v_lshl_add_u32 v4, v5, 2, v4
    s_and_b32 s12, s2, 7
    s_lshr_b32 s13, s2, 3
    s_mul_i32 s28, s12, 1280
    s_mul_i32 s29, s13, 48
    s_add_u32 s28, s28, s29
    s_mov_b32 s6, {NB}
    s_mov_b32 s7, 0x20000
    v_add_u32 v5, 10240, v4
    v_add_u32 v6, 20480, v4
    v_add_u32 v7, 30720, v4
    s_add_u32 s29, s28, 163840
    s_add_u32 s30, s28, {2*163840}
    s_add_u32 s31, s28, {3*163840}
    s_mov_b32 s18, {UB}
    s_mov_b32 s19, 0x20000
    s_cmp_ge_u32 s20, 4
    s_cselect_b32 s23, 999, s2
    s_cmp_ge_u32 s23, {NPROD}
    s_waitcnt lgkmcnt(0)
    s_cbranch_scc1 L_nox
    ''')
    if PRIO: a('s_setprio 1')
    for j in range(4):
        for r in range(4):
            a(f'buffer_load_dword v{X+4*j+r}, v{4+j}, s[4:7], s{28+r} offen')
    a(f'''
    L_nox:
    s_cmp_ge_u32 s2, 256
    s_cbranch_scc1 L_end
    s_mov_b32 s21, {EO}
    s_buffer_load_dword s36, s[16:19], s21
    v_and_b32 v1, 15, v0
    s_mov_b32 s33, 0
    s_mov_b32 s10, {NB}
    s_mov_b32 s11, 0x20000
    s_mov_b32 s41, s23
    ''')
    T0 = DR
    def uoff(dst, tau, tmp):
        a(f'''
        s_lshr_b32 s{dst}, s{tau}, 4
        s_lshl_b32 s{dst}, s{dst}, 3
        s_and_b32 s{tmp}, s{tau}, 7
        s_or_b32 s{dst}, s{dst}, s{tmp}
        s_mul_i32 s{dst}, s{dst}, {LS}
        s_bfe_u32 s{tmp}, s{tau}, 0x10003
        s_mul_i32 s{tmp}, s{tmp}, {HB}
        s_add_u32 s{dst}, s{dst}, s{tmp}
        ''')
    a(f'''
    s_lshr_b32 s34, s2, 4
    s_lshl_b32 s34, s34, 3
    s_or_b32 s34, s34, s12
    s_and_b32 s39, s13, 1
    s_lshl_b32 s39, s39, 10
    s_cmp_eq_u32 s2, 8
    s_cselect_b32 s34, 128, s34
    s_cselect_b32 s39, 0, s39
    s_sub_u32 s35, 256, s34
    s_and_b32 s35, s35, 255
    s_add_u32 s39, s39, s34
    ''')
    uoff(38, 34, 21)
    uoff(40, 35, 21)
    a(f'''
    v_lshl_add_u32 v{T0}, v3, 2, v{U9}
    v_subrev_u32 v{T0}, 4, v{T0}
    v_min_u32 v{T0}, 26, v{T0}
    v_mul_u32_u24 v124, {2*RS}, v2
    v_lshl_add_u32 v124, v{T0}, {SEG.bit_length()-1}, v124
    v_lshl_add_u32 v124, v{U8}, 4, v124
    v_lshl_add_u32 v{T0}, v{T0}, 2, v{U8}
    v_mul_u32_u24 v125, {VS}, v2
    v_mad_u32_u24 v125, v{T0}, 24, v125
    v_and_b32 v{T0+1}, 1, v0
    s_cmp_eq_u32 s2, 0
    s_cselect_b32 s31, 1, 99
    v_and_b32 v{T0+2}, 13, v1
    v_cmp_eq_u32 vcc, s31, v{T0+2}
    v_cvt_f32_u32 v{T0+3}, v2
    v_bfe_u32 v{T0+2}, v0, 1, 1
    v_cndmask_b32 v{T0}, v{U9}, 4, vcc
    v_cndmask_b32 v{T0+1}, v{T0+1}, 0, vcc
    v_lshl_add_u32 v{T0}, v{T0}, 8, s39
    v_cvt_f32_u32 v{T0}, v{T0}
    v_mul_f32 v{T0}, {f32(1/2048)}, v{T0}
    v_add_f32 v{T0+3}, v{T0+3}, v{T0+3}
    v_add_u32 v{T0+1}, v{T0+1}, v{T0+2}
    v_cvt_f32_u32 v{T0+1}, v{T0+1}
    v_mul_f32 v{T0+1}, {f32(0.25)}, v{T0+1}
    v_fma_f32 v{T0+1}, v{T0}, v{T0+3}, v{T0+1}
    v_add_f32 v{T0}, v{T0+1}, v{T0}
    v_cos_f32 v{T0+4}, v{T0+1}
    v_sin_f32 v{T0+5}, v{T0+1}
    v_cos_f32 v{T0+6}, v{T0}
    v_sin_f32 v{T0+7}, v{T0}
    v_lshlrev_b32 v{T0+2}, 4, v{T0+2}
    v_bfrev_b32 v{T0+3}, 1
    v_lshrrev_b32 v{T0+2}, v{T0+2}, v{T0+3}
    v_pk_mul_f32 v[{T0+4}:{T0+5}], v[{T0+4}:{T0+5}], 0.5 op_sel_hi:[1,0]
    v_pk_mul_f32 v[{T0+6}:{T0+7}], v[{T0+6}:{T0+7}], 0.5 op_sel_hi:[1,0]
    v_cvt_pk_bf16_f32 v{MA}, v{T0+4}, v{T0+5}
    v_cvt_pk_bf16_f32 v{MA+2}, v{T0+6}, v{T0+7}
    v_xor_b32 v{MA+1}, v{MA}, v{T0+2}
    v_xor_b32 v{MA+3}, v{MA+2}, v{T0+2}
    s_xor_b32 s25, s20, 4
    s_lshl_b32 s21, s25, 8
    s_add_u32 s21, s21, s39
    s_and_b32 s24, s21, 1023
    s_sub_u32 s22, 2048, s21
    s_mul_i32 s21, s21, 1280
    s_mul_i32 s22, s22, 1280
    s_cmp_eq_u32 s2, 0
    s_cselect_b32 s23, 5, 4
    ''')
    a(f'''
    s_cmp_ge_u32 s41, {NPROD}
    s_cbranch_scc1 L_other
    ''')
    M1 = 24
    F2 = 56
    D = 88
    TA, TB = 64, 65
    a(f'''
    v_and_b32 v{TA}, 1, v0
    v_lshlrev_b32 v{TA}, 3, v{TA}
    v_lshl_add_u32 v{TA}, v{U9}, 1, v{TA}
    v_bfe_u32 v{TB}, v0, 1, 1
    v_add_u32 v{TA}, v{TA}, v{TB}
    v_cvt_f32_u32 v{TA}, v{TA}
    v_lshl_add_u32 v{TB}, v2, 4, v3
    v_cvt_f32_u32 v{TB}, v{TB}
    v_mul_f32 v{TA}, {f32(1/256)}, v{TA}
    v_mul_f32 v{TB}, 4.0, v{TB}
    v_mul_f32 v{TB}, v{TB}, v{TA}
    ''')
    for j in range(4):
        for r in range(4):
            off = 16 * r + j
            t = 66 + 3 * (r & 1)
            if off: a(f'v_fmamk_f32 v{t}, v{TA}, {f32(float(off))}, v{TB}')
            else: a(f'v_mov_b32 v{t}, v{TB}')
            a(f'v_cos_f32 v{t+1}, v{t}')
            a(f'v_sin_f32 v{t+2}, v{t}')
            if r & 1:
                for rr in (r - 1, r):
                    t = 66 + 3 * (rr & 1)
                    a(f'v_cvt_pk_bf16_f32 v{M1+8*j+rr}, v{t+1}, v{t+2}')
                    a(f'v_cvt_pk_bf16_f32 v{M1+8*j+4+rr}, -v{t+2}, v{t+1}')
    a(f'''
    v_cvt_f32_u32 v{TA}, v1
    v_cvt_f32_u32 v{TB}, v2
    v_mul_f32 v{TA}, {f32(1/16)}, v{TA}
    v_mul_f32 v{TB}, 4.0, v{TB}
    v_mul_f32 v{TB}, v{TB}, v{TA}
    ''')
    for r in range(4):
        if r: a(f'v_add_f32 v{TB}, v{TB}, v{TA}')
        a(f'v_cos_f32 v{D+2*r}, v{TB}')
        a(f'v_sin_f32 v{D+1+2*r}, v{TB}')
    a(f'''
    v_and_b32 v{TA}, 1, v{U9}
    v_xor_b32 v{TB}, v{TA}, v2
    v_lshl_add_u32 v4, v{TB}, 2, v{U8}
    v_lshl_add_u32 v{TB}, v{U9}, 4, v3
    v_lshl_add_u32 v4, v{TB}, 4, v4
    v_lshlrev_b32 v4, 4, v4
    v_and_b32 v{TB}, 1, v3
    v_xor_b32 v{TB}, v{TB}, v{U8}
    v_lshl_add_u32 v5, v{TB}, 2, v{U9}
    v_lshl_add_u32 v{TB}, v3, 4, v2
    v_lshl_add_u32 v5, v{TB}, 4, v5
    v_lshlrev_b32 v5, 4, v5
    v_lshl_add_u32 v{TB}, v2, 4, v3
    v_lshrrev_b32 v6, 1, v{U9}
    v_lshl_add_u32 v{TB}, v{TB}, 1, v6
    v_mul_u32_u24 v6, {LS}, v{TB}
    v_mul_u32_u24 v{TA}, {HB}, v{TA}
    v_lshl_add_u32 v6, v{U8}, 4, v6
    v_add_u32 v6, v6, v{TA}
    s_mul_i32 s28, s12, {RS}
    s_mul_i32 s29, s13, {SEG}
    s_add_u32 s28, s28, s29
    s_add_u32 s29, s28, {8*LS}
    s_add_u32 s30, s28, {16*LS}
    s_add_u32 s31, s28, {24*LS}
    ''')
    for r in range(4):
        a(f'v_cvt_pk_bf16_f32 v{F2+r}, v{D+2*r}, v{D+1+2*r}')
        a(f'v_cvt_pk_bf16_f32 v{F2+4+r}, -v{D+1+2*r}, v{D+2*r}')
    Q = 72
    a('s_waitcnt lgkmcnt(0)')
    a(f's_add_u32 s36, s36, {TAGC}')
    for i in range(4):
        a(f'v_mov_b32 v{Q+4*i+3}, s36')
    for j in range(4):
        a(f's_waitcnt vmcnt({12-4*j})')
        if j == 3: st(a, 1)
        a(f'v_mfma_f32_16x16x32_bf16 v[{D+8*j}:{D+8*j+3}], v[{X+4*j}:{X+4*j+3}], v[{M1+8*j}:{M1+8*j+3}], 0')
        a(f'v_mfma_f32_16x16x32_bf16 v[{D+8*j+4}:{D+8*j+7}], v[{X+4*j}:{X+4*j+3}], v[{M1+8*j+4}:{M1+8*j+7}], 0')
    P = X
    for j in range(3):
        for i in range(3):
            a(f'v_cvt_pk_bf16_f32 v{P+4*i+j}, v{D+8*j+i}, v{D+8*j+4+i}')
    for i in range(3):
        a(f'v_cvt_pk_bf16_f32 v{P+4*i+3}, v{D+24+i}, v{D+28+i}')
        a(f'ds_write_b128 v4, v[{P+4*i}:{P+4*i+3}] offset:{1024*i}')
    a('s_waitcnt lgkmcnt(0)')
    a('s_barrier')
    for T in range(3):
        a(f'ds_read_b128 v[{X+4*T}:{X+4*T+3}], v5 offset:{1024*T}')
    for T in range(3):
        a(f's_waitcnt lgkmcnt({2-T})')
        a(f'v_mfma_f32_16x16x32_bf16 v[{D+8*T}:{D+8*T+3}], v[{F2}:{F2+3}], v[{X+4*T}:{X+4*T+3}], 0')
        a(f'v_mfma_f32_16x16x32_bf16 v[{D+8*T+4}:{D+8*T+7}], v[{F2+4}:{F2+7}], v[{X+4*T}:{X+4*T+3}], 0')
    for T in range(2):
        for i in range(4):
            a(f'v_cvt_pk_bf16_f32 v{Q+4*i+T}, v{D+8*T+i}, v{D+8*T+4+i}')
    for i in range(4):
        a(f'v_cvt_pk_bf16_f32 v{Q+4*i+2}, v{D+16+i}, v{D+20+i}')
        a(f'buffer_store_dwordx4 v[{Q+4*i}:{Q+4*i+3}], v6, s[16:19], s{28+i} offen sc1')
    st(a, 2)
    if PRIO: a('s_setprio 0')
    a('s_branch L_b1done')
    C0 = 24
    a(f'''
    L_other:
    s_mov_b32 s37, 0
    s_cmp_lt_u32 s20, 4
    s_cbranch_scc1 L_b1
    v_bfe_u32 v{C0}, v0, 5, 1
    v_and_b32 v{C0+1}, 31, v0
    v_and_b32 v{C0+2}, 1, v{U9}
    v_mad_u32_u24 v{C0+2}, v{C0+2}, 10, v{U8}
    v_bfe_u32 v{C0+3}, v0, 3, 2
    v_lshl_add_u32 v{C0+2}, v{C0+3}, 2, v{C0+2}
    v_and_b32 v{C0+3}, 3, v3
    v_lshl_add_u32 v{C0+4}, v{C0+3}, 1, v{C0}
    v_mul_u32_u24 v{C0+5}, 3, v{C0+3}
    v_mad_u32_u24 v{C0}, v{C0}, 10, v{C0+5}
    v_cvt_f32_u32 v{C0+2}, v{C0+2}
    v_cvt_f32_u32 v{C0+1}, v{C0+1}
    v_cvt_f32_u32 v{C0+4}, v{C0+4}
    v_cvt_f32_u32 v{C0}, v{C0}
    v_mul_f32 v{C0+6}, {f32(1/640)}, v{C0+2}
    v_mul_f32 v{C0+2}, {f32(1/20)}, v{C0+2}
    v_mul_f32 v{C0+1}, {f32(1/32)}, v{C0+1}
    v_mul_f32 v{C0+4}, 4.0, v{C0+4}
    v_mul_f32 v{C0}, v{C0}, v{C0+2}
    v_mul_f32 v{C0+7}, v{C0+4}, v{C0+6}
    v_mul_f32 v{C0+4}, v{C0+4}, v{C0+1}
    v_and_b32 v4, 63, v0
    v_lshlrev_b32 v4, 4, v4
    v_lshl_add_u32 v5, v{C0+3}, 10, v4
    ''')
    WC, WS_, WF = 32, 36, 40
    for r in range(4):
        a(f'v_cos_f32 v{WC+r}, v{C0+7}')
        a(f'v_sin_f32 v{WS_+r}, v{C0+7}')
        a(f'v_cos_f32 v{44+2*r}, v{C0+4}')
        a(f'v_sin_f32 v{45+2*r}, v{C0+4}')
        if r < 3:
            a(f'v_add_f32 v{C0+7}, v{C0+7}, v{C0+6}')
            a(f'v_add_f32 v{C0+4}, v{C0+4}, v{C0+1}')
    for r in range(3):
        a(f'v_cos_f32 v{52+2*r}, v{C0}')
        a(f'v_sin_f32 v{53+2*r}, v{C0}')
        if r < 2: a(f'v_add_f32 v{C0}, v{C0}, v{C0+2}')
    a(f'ds_write_b128 v5, v[{WC}:{WC+3}] offset:{LDS_C+6*1024}')
    a(f'ds_write_b128 v5, v[{WS_}:{WS_+3}] offset:{LDS_C+10*1024}')
    for r in range(4):
        a(f'v_cvt_pk_bf16_f32 v{WF+r}, v{44+2*r}, v{45+2*r}')
    a(f'ds_write_b128 v5, v[{WF}:{WF+3}] offset:{LDS_C+14*1024}')
    for k in range(3):
        a(f'v_add_u32 v6, {k}, v{C0+5}')
        a(f'v_lshrrev_b32 v7, 2, v6')
        a(f'v_and_b32 v6, 3, v6')
        a(f'v_lshl_add_u32 v7, v7, 10, v4')
        a(f'v_lshl_add_u32 v7, v6, 2, v7')
        a(f'v_cvt_pk_bf16_f32 v{58+2*k}, v{52+2*k}, v{53+2*k}')
        a(f'v_cvt_pk_bf16_f32 v{59+2*k}, -v{53+2*k}, v{52+2*k}')
        a(f'ds_write_b32 v7, v{58+2*k} offset:{LDS_C}')
        a(f'ds_write_b32 v7, v{59+2*k} offset:{LDS_C+3*1024}')
    a(f'''
    L_b1:
    s_waitcnt lgkmcnt(0)
    s_add_u32 s36, s36, {TAGC}
    s_barrier
    L_b1done:
    v_mov_b32 v4, s36
    s_cmp_lg_u32 s20, 6
    s_cbranch_scc1 L_nohint
    s_lshr_b32 s26, s2, 2
    s_lshl_b32 s26, s26, 7
    s_and_b32 s27, s2, 3
    s_lshl_b32 s27, s27, 2
    s_add_u32 s26, s26, s27
    s_add_u32 s26, s26, {HT}
    s_mov_b64 exec, 1
    buffer_store_dword v4, off, s[16:19], s26 sc1
    s_mov_b64 exec, -1
    L_nohint:
    s_cmp_lg_u32 s20, 7
    s_cbranch_scc1 L_nopoll
    s_and_b32 s26, s2, {NGO-1}
    s_lshl_b32 s26, s26, 7
    s_add_u32 s26, s26, {GO}
    s_mov_b64 exec, 1
    ''')
    st(a, 1)
    a(f'''
    L_gpoll:
    buffer_load_dword v{G}, off, s[16:19], s26 sc1
    s_waitcnt vmcnt(0)
    v_cmp_eq_u32 vcc, s36, v{G}
    s_cbranch_vccnz L_gdone
    s_sleep {SLEEP}
    ''')
    bounded('L_gpoll')
    a(f'''
    L_gdone:
    s_mov_b64 exec, -1
    L_nopoll:
    s_cmp_lg_u32 s20, 0
    s_cbranch_scc1 L_b2
    s_cmp_eq_u32 s2, {MASTER}
    s_cbranch_scc1 L_master
    s_cmp_eq_u32 s2, 0
    s_cbranch_scc1 L_b2
    s_barrier
    s_branch L_fin
    L_b2:
    s_barrier
    ''')
    st(a, 3)
    def uloads():
        for k in range(4):
            a(f'buffer_load_dwordx4 v[{G+4*k}:{G+4*k+3}], v124, s[16:19], s{38 if k % 2 == 0 else 40} offen offset:{RS*(k>>1)} sc1')
    uloads()
    a('''s_cmp_ge_u32 s25, s23
    s_cbranch_scc1 L_wait''')
    a('''
    v_and_b32 v2, 63, v0
    v_lshlrev_b32 v2, 4, v2
    ''')
    for k in range(18):
        a(f'ds_read_b128 v[{BRE+4*k}:{BRE+4*k+3}], v2 offset:{LDS_C+1024*k}')
    a(f'''
    v_bfe_u32 v{T0}, v0, 5, 1
    v_and_b32 v{T0+1}, 31, v0
    v_and_b32 v6, 3, v3
    v_mul_u32_u24 v6, {VS}, v6
    v_mul_u32_u24 v7, 1280, v{T0}
    v_add_u32 v6, v6, v7
    v_lshl_add_u32 v6, v{T0+1}, 2, v6
    v_lshl_add_u32 v7, v{T0+1}, 1, v{T0}
    v_mul_u32_u24 v7, 20, v7
    v_sub_u32 v1, 1260, v7
    s_branch L_wait
    L_retry:
    s_mov_b64 exec, -1
    ''')
    if RSLEEP: a(f's_sleep {RSLEEP}')
    if DIAG: a(f's_add_u32 s{diag.SB+12}, s{diag.SB+12}, 1')
    uloads()
    a('L_wait:')
    for k in range(4):
        a(f's_waitcnt vmcnt({3-k})')
        a(f'v_cmpx_eq_u32 vcc, s36, v{G+4*k+3}')
    a('s_cmp_eq_u64 vcc, -1')
    if BOUND:
        a(f'''s_cbranch_scc1 L_go
        s_add_u32 s33, s33, 1
        s_cmp_lt_u32 s33, {BOUND}
        s_cbranch_scc1 L_retry
        s_mov_b64 exec, -1
        L_go:''')
    else:
        a('s_cbranch_scc0 L_retry')
    st(a, 4)
    DA = DR
    a(f'''
    v_swap_b32 v{G+1}, v{G+4}
    v_swap_b32 v{G+2}, v{G+8}
    v_mov_b32 v{G+3}, v{G+12}
    v_swap_b32 v{G+6}, v{G+9}
    v_mov_b32 v{G+7}, v{G+13}
    v_mov_b32 v{G+11}, v{G+14}
    ''')
    for T in range(3):
        a(f'v_mfma_f32_16x16x32_bf16 v[{DA+4*T}:{DA+4*T+3}], v[{MA}:{MA+3}], v[{G+4*T}:{G+4*T+3}], 0')
    for T in range(3):
        for pi in range(2):
            a(f'v_cvt_pk_bf16_f32 v{DI+2*T+pi}, v{DA+4*T+2*pi}, v{DA+4*T+2*pi+1}')
        a(f'ds_write_b64 v125, v[{DI+2*T}:{DI+2*T+1}] offset:{8*T}')
    a(f'''
    s_waitcnt lgkmcnt(0)
    s_barrier
    s_cmp_ge_u32 s25, s23
    s_cbranch_scc1 L_fin
    ''')
    if DIAG:
        st(a, 5); a('s_waitcnt lgkmcnt(0)')
    a(f'''
    ds_read2_b32 v[{G}:{G+1}], v6 offset0:0 offset1:32
    ds_read2_b32 v[{G+2}:{G+3}], v6 offset0:64 offset1:96
    ds_read2_b32 v[{G+4}:{G+5}], v6 offset0:128 offset1:160
    ds_read2_b32 v[{G+6}:{G+7}], v6 offset0:192 offset1:224
    ds_read_b32 v{G+8}, v6 offset:1024
    ds_read_b32 v{G+9}, v6 offset:1152
    s_cmp_lg_u32 s24, 0
    s_cbranch_scc1 L_norm
    s_lshl_b32 s25, s25, 2
    s_waitcnt lgkmcnt(0)
    ''')
    for r in range(10):
        a(f'v_bfe_u32 v{G+r}, v{G+r}, s25, 16')
    a('s_nop 1')
    a('L_norm:')
    a('s_waitcnt lgkmcnt(4)')
    a(f'v_mfma_f32_32x32x16_bf16 v[{DR}:{DR+15}], v[{G}:{G+3}], v[{BRE}:{BRE+3}], 0')
    a(f'v_mfma_f32_32x32x16_bf16 v[{DI}:{DI+15}], v[{G}:{G+3}], v[{BIM}:{BIM+3}], 0')
    a('s_waitcnt lgkmcnt(2)')
    a(f'v_mfma_f32_32x32x16_bf16 v[{DR}:{DR+15}], v[{G+4}:{G+7}], v[{BRE+4}:{BRE+7}], v[{DR}:{DR+15}]')
    a(f'v_mfma_f32_32x32x16_bf16 v[{DI}:{DI+15}], v[{G+4}:{G+7}], v[{BIM+4}:{BIM+7}], v[{DI}:{DI+15}]')
    a('s_waitcnt lgkmcnt(0)')
    a(f'v_mfma_f32_32x32x8_bf16 v[{DR}:{DR+15}], v[{G+8}:{G+9}], v[{BRE+8}:{BRE+9}], v[{DR}:{DR+15}]')
    a(f'v_mfma_f32_32x32x8_bf16 v[{DI}:{DI+15}], v[{G+8}:{G+9}], v[{BIM+8}:{BIM+9}], v[{DI}:{DI+15}]')
    Y = BRE
    TT = 40
    for s in range(4):
        if PK:
            for r in (0, 2):
                i = 4 * s + r
                a(f'v_pk_mul_f32 v[{TT+r}:{TT+r+1}], v[{DR+i}:{DR+i+1}], v[{TC+i}:{TC+i+1}]')
            for r in (0, 2):
                i = 4 * s + r
                a(f'v_pk_fma_f32 v[{TT+r}:{TT+r+1}], v[{DI+i}:{DI+i+1}], v[{TS+i}:{TS+i+1}], v[{TT+r}:{TT+r+1}]')
            for r in (0, 2):
                i = 4 * s + r
                a(f'v_pk_mul_f32 v[{DI+i}:{DI+i+1}], v[{DI+i}:{DI+i+1}], v[{TC+i}:{TC+i+1}]')
            for r in (0, 2):
                i = 4 * s + r
                a(f'v_pk_fma_f32 v[{DI+i}:{DI+i+1}], v[{DR+i}:{DR+i+1}], v[{TS+i}:{TS+i+1}], v[{DI+i}:{DI+i+1}] neg_lo:[1,0,0] neg_hi:[1,0,0]')
        else:
            for r in range(4):
                i = 4 * s + r
                ar, ai, t = DR + i, DI + i, TT + r
                a(f'v_mul_f32 v{t}, v{ar}, v{TC+i}')
                a(f'v_fmac_f32 v{t}, v{ai}, v{TS+i}')
                a(f'v_mul_f32 v{ai}, v{ai}, v{TC+i}')
                a(f'v_fma_f32 v{ai}, -v{ar}, v{TS+i}, v{ai}')
        for r in range(4):
            a(f'v_cvt_pk_bf16_f32 v{G+4*s+r}, v{TT+r}, v{DI+4*s+r}')
        c = '0' if s == 0 else f'v[{Y}:{Y+15}]'
        a(f'v_mfma_f32_32x32x16_bf16 v[{Y}:{Y+15}], v[{G+4*s}:{G+4*s+3}], v[{FC+4*s}:{FC+4*s+3}], {c}')
    O1, O2 = TC, TC + 8
    for j in range(5):
        a(f'v_cvt_pk_bf16_f32 v{O1+j}, v{Y+2*j}, v{Y+2*j+1}')
    a(f'buffer_store_dwordx4 v[{O1}:{O1+3}], v7, s[8:11], s21 offen')
    a(f'buffer_store_dword v{O1+4}, v7, s[8:11], s21 offen offset:16')
    for j in range(5):
        a(f'v_cvt_pk_bf16_f32 v{O2+j}, v{Y+10-2*j}, v{Y+9-2*j}')
    a(f'''
    s_cmp_eq_u32 s24, 0
    s_cbranch_scc1 L_fin
    buffer_store_dwordx4 v[{O2}:{O2+3}], v1, s[8:11], s22 offen
    buffer_store_dword v{O2+4}, v1, s[8:11], s22 offen offset:16
    L_fin:
    ''')
    if DIAG: diag.stamp_store(a, 0, 16, vb=100)
    a('L_end:')
    a('s_endpgm')
    a(f'''
    L_master:
    v_lshlrev_b32 v5, 7, v0
    s_mov_b32 s21, {HT}
    s_mov_b32 s35, {THR}
    L_hpoll:
    buffer_load_dwordx4 v[16:19], v5, s[16:19], s21 offen sc1
    s_waitcnt vmcnt(0)
    v_cmp_eq_u32 s[38:39], s36, v16
    v_cmp_eq_u32 s[40:41], s36, v17
    v_cmp_eq_u32 s[42:43], s36, v18
    v_cmp_eq_u32 vcc, s36, v19
    s_bcnt1_i32_b64 s34, s[38:39]
    s_bcnt1_i32_b64 s22, s[40:41]
    s_add_u32 s34, s34, s22
    s_bcnt1_i32_b64 s22, s[42:43]
    s_add_u32 s34, s34, s22
    s_bcnt1_i32_b64 s22, vcc
    s_add_u32 s34, s34, s22
    s_cmp_ge_u32 s34, s35
    s_cbranch_scc1 L_hdone
    ''')
    bounded('L_hpoll')
    a(f'''
    L_hdone:
    s_cmp_eq_u32 s37, 1
    s_cbranch_scc1 L_mend
    s_mov_b32 s37, 1
    s_mov_b64 exec, {(1 << NGO) - 1 if NGO < 32 else -1}
    s_mov_b32 s22, {GO}
    buffer_store_dword v4, v5, s[16:19], s22 offen sc1
    s_mov_b64 exec, -1
    ''')
    st(a, 2)
    a(f'''
    s_barrier
    s_barrier
    s_mov_b32 s35, 256
    s_branch L_hpoll
    L_mend:
    s_mov_b64 exec, 1
    s_mov_b32 s21, {EO}
    buffer_store_dword v4, off, s[16:19], s21
    s_mov_b64 exec, -1
    s_branch L_fin
    ''')
    return 128

def main(out):
    a = Asm(); nv = kernel(a); a.pad(True)
    s = f'''; FNet spectral mixing via MFMA FFT (single launch, tagged in-kernel hand-off)
; @launch grid=(256,1,1) block=(512,1,1) lds={LDS_TOTAL}
.amdgcn_target "amdgcn-amd-amdhsa--gfx950"
.text
.globl {KN}
.p2align 8
.type {KN},@function
''' + a.text()
    s += f'''.section .rodata,"a"
.p2align 6
.amdhsa_kernel {KN}
  .amdhsa_next_free_vgpr {nv}
  .amdhsa_next_free_sgpr {96 if DIAG else 48}
  .amdhsa_accum_offset {nv}
  .amdhsa_group_segment_fixed_size 0
  .amdhsa_kernarg_size 64
  .amdhsa_user_sgpr_count 2
  .amdhsa_user_sgpr_kernarg_segment_ptr 1
  .amdhsa_system_sgpr_workgroup_id_x 1
  .amdhsa_float_denorm_mode_32 3
.end_amdhsa_kernel
'''
    open(out, 'w').write(s)

main(sys.argv[1])
```

```python
import sys, struct, math
sys.path.insert(0, 'gen')
from asmlib import Asm
import diag
OPT = dict(a.split('=') for a in sys.argv[2:])
DIAG = 'st' in OPT
PK = int(OPT.get('pk', 1))
SLEEP = int(OPT.get('sleep', 2))
RSLEEP = int(OPT.get('rsleep', 2))
BOUND = int(OPT.get('bound', 0))
HINT = OPT.get('hint', 'x')
MEARLY = int(OPT.get('mearly', 1))
TLB = int(OPT.get('tlb', 0))
GATE = OPT.get('gate', 'ack')
CPRE = int(OPT.get('cpre', 1))
def st(a, k):
    if DIAG: diag.stamp(a, k)
def f32(x):
    return '0x%08x' % struct.unpack('<I', struct.pack('<f', x))[0]

NB = 2621440
NPROD = 224
PAIR = int(OPT.get('pair', 1))
if PAIR:
    RS = 14 * 128; LS = 16 * RS; SEG = 128; HB = 64
else:
    RS = 14 * 64; HB = 16 * RS; LS = 2 * HB; SEG = 64
EO = 64 * LS
UB = EO + 128
MASTER = 1
TAGC = 0x9E3779B8
PMASK = int(OPT.get('pmask', '0x00010001'), 16)
KN = 'standalone__spectral_fnet__prompt_kernel'
VS = 1344
LDS_V = 8192
LDS_T = LDS_V + 4 * VS
LDS_C = 14336
LDS_TOTAL = LDS_C + 16 * 1024
G0, MA = 8, 24
BRE, BIM, TC, TS, FC = 32, 40, 48, 64, 80
DR, DI = 96, 112
G1 = DI

def kernel(a):
    def bounded(lbl):
        if BOUND:
            a(f'''s_add_u32 s33, s33, 1
            s_cmp_lt_u32 s33, {BOUND}
            s_cbranch_scc1 {lbl}''')
        else:
            a(f's_branch {lbl}')
    a(f'{KN}:')
    if DIAG: diag.init(a)
    st(a, 0)
    X = 8
    M1 = 96
    D = 112
    a(f'''
    s_load_dwordx2 s[4:5], s[0:1], 0
    s_load_dwordx2 s[16:17], s[0:1], 56
    s_load_dwordx2 s[8:9], s[0:1], 40
    s_load_dwordx2 s[44:45], s[0:1], 48
    s_getpc_b64 s[24:25]
    L_pf:
    v_xor_b32 v1, 448, v0
    v_lshlrev_b32 v1, 6, v1
    s_mov_b32 s26, L_codeend-L_pf
    s_mov_b32 s27, 0x20000
    buffer_load_dword v15, v1, s[24:27], 0 offen
    v_lshrrev_b32 v3, 6, v0
    v_bfe_u32 v2, v0, 4, 2
    v_and_b32 v1, 3, v0
    v_bfe_u32 v7, v0, 2, 2
    s_and_b32 s12, s2, 15
    s_lshr_b32 s13, s2, 4
    s_mul_i32 s14, s13, 12
    v_lshl_add_u32 v4, v2, 5, v3
    v_lshl_add_u32 v4, v4, 4, s12
    v_mul_u32_u24 v4, 1280, v4
    v_min_u32 v5, 2, v1
    v_mad_u32_u24 v5, v7, 3, v5
    v_add_lshl_u32 v5, v5, s14, 2
    v_readfirstlane_b32 s20, v3
    v_cmp_eq_u32 vcc, 0, v5
    v_add3_u32 v16, v4, v5, -2
    s_mov_b32 s6, {NB}
    v_cndmask_b32 v6, v5, v17, vcc
    '''.replace('    v_cndmask_b32 v6, v5, v17, vcc\n', f'    v_mov_b32 v17, 1280\n    v_cndmask_b32 v6, v5, v17, vcc\n'))
    a(f'''
    v_bfrev_b32 v19, 1
    v_cndmask_b32 v16, v16, v19, vcc
    v_add_u32 v4, v4, v6
    v_sub_u32 v17, {1665*1280}, v4
    v_add_u32 v18, {491520}, v17
    v_subrev_u32 v19, {NB}, v18
    v_min_u32 v18, v18, v19
    s_mov_b32 s7, 0x20000
    s_mov_b32 s29, 163840
    s_mov_b32 s30, {2*163840}
    s_mov_b32 s31, {3*163840}
    s_mov_b32 s18, {UB}
    s_mov_b32 s19, 0x20000
    ''')
    TA, TB = 20, 21
    a(f'''
    v_and_b32 v{TA}, 1, v0
    v_lshlrev_b32 v{TA}, 3, v{TA}
    v_lshl_add_u32 v{TA}, v7, 1, v{TA}
    v_bfe_u32 v{TB}, v0, 1, 1
    v_add_u32 v{TA}, v{TA}, v{TB}
    v_cvt_f32_u32 v{TA}, v{TA}
    v_lshl_add_u32 v{TB}, v2, 5, v3
    v_cvt_f32_u32 v{TB}, v{TB}
    v_mul_f32 v{TA}, {f32(1/128)}, v{TA}
    v_mul_f32 v{TB}, v{TB}, v{TA}
    v_mul_f32 v{TA}, {f32(8.0)}, v{TA}
    s_cmp_ge_u32 s2, {NPROD}
    s_waitcnt lgkmcnt(0)
    s_cbranch_scc1 L_nox
    buffer_load_dword v{X}, v16, s[4:7], 0 offen
    buffer_load_dword v{X+1}, v16, s[4:7], s29 offen
    buffer_load_dword v{X+2}, v16, s[4:7], s30 offen
    buffer_load_dword v{X+3}, v16, s[4:7], s31 offen
    buffer_load_dword v{X+4}, v18, s[4:7], 0 offen
    buffer_load_dword v{X+5}, v17, s[4:7], s30 offen
    buffer_load_dword v{X+6}, v17, s[4:7], s29 offen
    buffer_load_dword v{X+7}, v17, s[4:7], 0 offen
    L_nox:
    s_cmp_ge_u32 s2, 256
    s_cbranch_scc1 L_end
    s_mov_b32 s33, 0
    s_cmp_lg_u32 s20, 0
    s_cbranch_scc1 L_noe
    s_mov_b32 s21, {EO}
    s_buffer_load_dword s36, s[16:19], s21
    L_noe:
    ''')
    if TLB:
        a(f'''
        s_cmp_lg_u32 s20, 4
        s_cbranch_scc1 L_notlb
        s_mov_b32 s10, {NB}
        s_mov_b32 s11, 0x20000
        v_and_b32 v22, 63, v0
        v_mul_u32_u24 v22, {40960 if TLB == 1 else 1310720}, v22
        s_mov_b32 s21, {EO}
        s_mov_b64 exec, {-1 if TLB == 1 else 3}
        buffer_load_dword v23, v22, s[8:11], 0 offen
        s_mov_b64 exec, 1
        buffer_load_dword v23, off, s[16:19], s21
        s_mov_b64 exec, -1
        L_notlb:
        ''')
    for r in range(4):
        a(f'v_cos_f32 v{D+2*r}, v{TB}')
        a(f'v_sin_f32 v{D+1+2*r}, v{TB}')
        if r < 3: a(f'v_add_f32 v{TB}, v{TB}, v{TA}')
    a(f'''
    v_and_b32 v4, 1, v7
    v_lshlrev_b32 v4, 1, v4
    v_xor_b32 v4, v4, v2
    v_lshl_add_u32 v4, v1, 2, v4
    v_lshl_add_u32 v4, v7, 8, v4
    s_lshr_b32 s21, s20, 1
    s_lshl_b32 s21, s21, 7
    s_and_b32 s22, s20, 1
    s_lshl_b32 s22, s22, 2
    s_add_u32 s21, s21, s22
    v_lshl_add_u32 v4, v4, 3, s21
    ''')
    for r in range(4):
        c, s_ = D + 2 * r, D + 1 + 2 * r
        a(f'v_cvt_pk_bf16_f32 v{M1+r}, v{c}, v{s_}')
        a(f'v_cvt_pk_bf16_f32 v{M1+4+r}, -v{s_}, v{c}')
        a(f'v_cvt_pk_bf16_f32 v{M1+8+r}, v{s_}, v{c}')
        a(f'v_cvt_pk_bf16_f32 v{M1+12+r}, v{c}, -v{s_}')
    a('''
    s_cmp_ge_u32 s20, 4
    s_cbranch_scc1 L_upper
    ''')
    F2 = 16
    Q = 24
    def hint_store():
        a(f'''
        s_mov_b64 exec, 1
        buffer_store_dword v{Q+3}, off, s[16:19], s26 sc1
        s_mov_b64 exec, -1
        ''')
    a(f'''
    v_bfe_u32 v{TA}, v0, 1, 3
    v_cvt_f32_u32 v{TA}, v{TA}
    v_and_b32 v{TB}, 1, v0
    v_cvt_f32_u32 v{TB}, v{TB}
    v_cvt_f32_u32 v22, v2
    v_mul_f32 v{TA}, {f32(0.125)}, v{TA}
    v_mul_f32 v{TB}, {f32(0.25)}, v{TB}
    v_add_f32 v22, v22, v22
    v_fma_f32 v{TB}, v22, v{TA}, v{TB}
    v_add_f32 v{TA}, v{TA}, v{TB}
    v_cos_f32 v22, v{TB}
    v_sin_f32 v23, v{TB}
    v_cos_f32 v18, v{TA}
    v_sin_f32 v19, v{TA}
    v_and_b32 v5, 63, v0
    s_lshr_b32 s22, s22, 1
    v_xor_b32 v5, s22, v5
    s_lshl_b32 s21, s20, 11
    v_lshl_add_u32 v5, v5, 3, s21
    v_lshl_add_u32 v6, v2, 3, v3
    v_lshrrev_b32 v{TA}, 1, v7
    v_lshl_add_u32 v6, v6, 1, v{TA}
    v_mul_u32_u24 v6, {LS}, v6
    v_and_b32 v{TA}, {7 if PAIR else 3}, v0
    v_lshl_add_u32 v6, v{TA}, 4, v6
    ''')
    if not PAIR:
        a(f'v_and_b32 v{TA}, 1, v7\n v_mul_u32_u24 v{TA}, {HB}, v{TA}\n v_add_u32 v6, v6, v{TA}')
    a(f'''
    v_cvt_pk_bf16_f32 v{F2}, v22, v23
    v_cvt_pk_bf16_f32 v{F2+1}, v18, v19
    v_mov_b32 v18, {LDS_T}
    s_mul_i32 s28, s12, {RS}
    s_mul_i32 s29, s13, {SEG}
    s_add_u32 s28, s28, s29
    s_add_u32 s29, s28, {8*LS}
    s_cmp_lg_u32 s20, 0
    s_cbranch_scc1 L_stage1
    s_mov_b32 s46, 256
    s_mov_b32 s47, 0x20000
    s_waitcnt lgkmcnt(0)
    s_add_u32 s36, s36, {TAGC}
    s_or_b32 s36, s36, 1
    v_mov_b32 v{Q+3}, s36
    s_cmp_lt_u32 s2, {NPROD}
    s_cbranch_scc1 L_tagp
    buffer_load_dword v19, off, s[44:47], 0 sc1
    s_waitcnt vmcnt(0)
    v_cmp_eq_u32 vcc, 0, v19
    v_cndmask_b32 v{Q+3}, v19, v{Q+3}, vcc
    L_tagp:
    ds_write_b32 v18, v{Q+3}
    s_cmp_lg_u32 s2, {MASTER}
    s_cbranch_scc1 L_stage1
    s_mov_b64 exec, 1
    buffer_store_dword v{Q+3}, off, s[44:47], 0 sc1
    s_mov_b64 exec, -1
    s_waitcnt vmcnt(1)
    s_branch L_stage1x
    ''')

    def consts():
        C0 = 32
        a(f'''
        v_bfe_u32 v{C0}, v0, 5, 1
        v_and_b32 v{C0+1}, 31, v0
        v_and_b32 v{C0+2}, 1, v7
        v_mad_u32_u24 v{C0+2}, v{C0+2}, 10, v1
        v_bfe_u32 v{C0+3}, v0, 3, 2
        v_lshl_add_u32 v{C0+2}, v{C0+3}, 2, v{C0+2}
        s_and_b32 s21, s20, 3
        s_lshl_b32 s22, s21, 1
        v_add_u32 v{C0+4}, s22, v{C0}
        v_mad_u32_u24 v{C0+5}, v{C0}, 5, s21
        v_mad_u32_u24 v{C0}, v{C0}, 5, 4
        s_and_b32 s22, s20, 1
        s_cselect_b64 vcc, -1, 0
        s_cselect_b32 s23, 0.5, 1.0
        v_cvt_f32_u32 v{C0+2}, v{C0+2}
        v_cvt_f32_u32 v{C0+1}, v{C0+1}
        v_cvt_f32_u32 v{C0+4}, v{C0+4}
        v_cndmask_b32 v{C0}, v{C0}, 10, vcc
        v_cvt_f32_u32 v{C0+5}, v{C0+5}
        v_cvt_f32_u32 v{C0}, v{C0}
        v_mul_f32 v{C0+6}, {f32(1/640)}, v{C0+2}
        v_mul_f32 v{C0+2}, {f32(1/20)}, v{C0+2}
        v_mul_f32 v{C0+1}, {f32(1/32)}, v{C0+1}
        v_mul_f32 v{C0+4}, 4.0, v{C0+4}
        v_mul_f32 v{C0+5}, v{C0+5}, v{C0+2}
        v_mul_f32 v{C0}, v{C0}, v{C0+2}
        v_mul_f32 v{C0+7}, v{C0+4}, v{C0+6}
        v_mul_f32 v{C0+4}, v{C0+4}, v{C0+1}
        v_cos_f32 v60, v{C0+5}
        v_sin_f32 v61, v{C0+5}
        v_cos_f32 v62, v{C0}
        v_sin_f32 v63, v{C0}
        v_and_b32 v{C0+3}, 63, v0
        v_lshlrev_b32 v{C0+3}, 4, v{C0+3}
        v_lshl_add_u32 v{C0+2}, s21, 10, v{C0+3}
        v_lshl_add_u32 v{C0+5}, s21, 2, v{C0+3}
        v_lshl_add_u32 v{C0}, s22, 2, v{C0+3}
        ''')
        WC, WS_, WF = 40, 44, 48
        for r in range(4):
            a(f'v_cos_f32 v{WC+r}, v{C0+7}')
            a(f'v_sin_f32 v{WS_+r}, v{C0+7}')
            a(f'v_cos_f32 v{52+2*r}, v{C0+4}')
            a(f'v_sin_f32 v{53+2*r}, v{C0+4}')
            if r < 3:
                a(f'v_add_f32 v{C0+7}, v{C0+7}, v{C0+6}')
                a(f'v_add_f32 v{C0+4}, v{C0+4}, v{C0+1}')
        a(f'''
        v_mul_f32 v62, s23, v62
        v_mul_f32 v63, s23, v63
        v_cvt_pk_bf16_f32 v64, v60, v61
        v_cvt_pk_bf16_f32 v65, -v61, v60
        v_cvt_pk_bf16_f32 v66, v62, v63
        v_cvt_pk_bf16_f32 v67, -v63, v62
        ds_write_b128 v{C0+2}, v[{WC}:{WC+3}] offset:{LDS_C+4*1024}
        ds_write_b128 v{C0+2}, v[{WS_}:{WS_+3}] offset:{LDS_C+8*1024}
        ''')
        for r in range(4):
            a(f'v_cvt_pk_bf16_f32 v{WF+r}, v{52+2*r}, v{53+2*r}')
        a(f'''
        ds_write_b32 v{C0+5}, v64 offset:{LDS_C}
        ds_write_b32 v{C0+5}, v65 offset:{LDS_C+2048}
        ds_write_b32 v{C0}, v66 offset:{LDS_C+1024}
        ds_write_b32 v{C0}, v67 offset:{LDS_C+3072}
        ds_write_b128 v{C0+2}, v[{WF}:{WF+3}] offset:{LDS_C+12*1024}
        ''')
    def uoff(dst, tau, tmp):
        a(f'''
        s_lshr_b32 s{dst}, s{tau}, 4
        s_lshl_b32 s{dst}, s{dst}, 3
        s_and_b32 s{tmp}, s{tau}, 7
        s_or_b32 s{dst}, s{dst}, s{tmp}
        s_mul_i32 s{dst}, s{dst}, {LS}
        s_and_b32 s{tmp}, s{tau}, 8
        s_mul_i32 s{tmp}, s{tmp}, {HB//8}
        s_add_u32 s{dst}, s{dst}, s{tmp}
        s_add_u32 s{dst+1}, s{dst}, {8*RS}
        ''')
    def setup():
        T0 = 68
        a(f'''
        s_lshr_b32 s34, s2, 5
        s_lshl_b32 s34, s34, 3
        s_and_b32 s35, s2, 7
        s_or_b32 s34, s34, s35
        s_bfe_u32 s42, s2, 0x20003
        s_lshl_b32 s42, s42, 9
        s_and_b32 s35, s2, 0xf7
        s_cmp_eq_u32 s35, 16
        s_cselect_b32 s34, 64, s34
        s_cselect_b32 s35, 1024, 0
        s_sub_u32 s42, s42, s35
        s_sub_u32 s35, 128, s34
        s_and_b32 s35, s35, 127
        s_add_u32 s42, s42, s34
        ''')
        uoff(38, 34, 21)
        uoff(40, 35, 21)
        a(f'''
        v_lshl_add_u32 v{T0}, v3, 2, v7
        v_subrev_u32 v{T0}, 16, v{T0}
        v_min_u32 v{T0}, 13, v{T0}
        v_mul_u32_u24 v5, {2*RS}, v2
        v_lshl_add_u32 v5, v{T0}, {SEG.bit_length()-1}, v5
        v_lshl_add_u32 v5, v1, 4, v5
        v_lshl_add_u32 v{T0}, v{T0}, 2, v1
        v_mul_u32_u24 v6, {VS}, v2
        v_mad_u32_u24 v6, v{T0}, 24, v6
        v_and_b32 v{T0+1}, 1, v0
        s_cmp_eq_u32 s2, 0
        s_cselect_b32 s31, 1, 99
        v_and_b32 v{T0+2}, 13, v0
        v_cmp_eq_u32 vcc, s31, v{T0+2}
        v_cvt_f32_u32 v{T0+3}, v2
        v_bfe_u32 v{T0+2}, v0, 1, 1
        v_cndmask_b32 v{T0}, v7, 8, vcc
        v_cndmask_b32 v{T0+1}, v{T0+1}, 0, vcc
        v_lshl_add_u32 v{T0}, v{T0}, 7, s42
        v_cvt_f32_u32 v{T0}, v{T0}
        v_mul_f32 v{T0}, {f32(1/2048)}, v{T0}
        v_add_f32 v{T0+3}, v{T0+3}, v{T0+3}
        v_add_u32 v{T0+1}, v{T0+1}, v{T0+2}
        v_cvt_f32_u32 v{T0+1}, v{T0+1}
        v_mul_f32 v{T0+1}, {f32(0.25)}, v{T0+1}
        v_fma_f32 v{T0+1}, v{T0}, v{T0+3}, v{T0+1}
        v_add_f32 v{T0+3}, v{T0+1}, v{T0}
        v_cos_f32 v{T0+4}, v{T0+1}
        v_sin_f32 v{T0+5}, v{T0+1}
        v_cos_f32 v{T0+6}, v{T0+3}
        v_sin_f32 v{T0+7}, v{T0+3}
        v_fmamk_f32 v{T0+1}, v{T0}, {f32(8.0)}, v{T0+1}
        v_fmamk_f32 v{T0+3}, v{T0}, {f32(8.0)}, v{T0+3}
        v_cos_f32 v{T0+8}, v{T0+1}
        v_sin_f32 v{T0+9}, v{T0+1}
        v_cos_f32 v{T0+10}, v{T0+3}
        v_sin_f32 v{T0+11}, v{T0+3}
        v_lshlrev_b32 v{T0+2}, 4, v{T0+2}
        v_bfrev_b32 v{T0+3}, 1
        v_lshrrev_b32 v{T0+2}, v{T0+2}, v{T0+3}
        ''')
        for k in range(4):
            a(f'v_pk_mul_f32 v[{T0+4+2*k}:{T0+5+2*k}], v[{T0+4+2*k}:{T0+5+2*k}], 0.5 op_sel_hi:[1,0]')
        for k in range(4):
            a(f'v_cvt_pk_bf16_f32 v{MA+2*k}, v{T0+4+2*k}, v{T0+5+2*k}')
        for k in range(4):
            a(f'v_xor_b32 v{MA+2*k+1}, v{MA+2*k}, v{T0+2}')
    a('L_upper:')
    if CPRE >= 1: consts()
    if CPRE >= 2: setup()
    a('''
    L_stage1:
    s_waitcnt vmcnt(0)
    L_stage1x:
    ''')
    st(a, 1)
    a(f'''
    s_cmp_ge_u32 s2, {NPROD}
    s_cbranch_scc1 L_b1
    v_mfma_f32_16x16x32_bf16 v[{D}:{D+3}], v[{X}:{X+3}], v[{M1}:{M1+3}], 0
    v_mfma_f32_16x16x32_bf16 v[{D+4}:{D+7}], v[{X}:{X+3}], v[{M1+4}:{M1+7}], 0
    v_mfma_f32_16x16x32_bf16 v[{D}:{D+3}], v[{X+4}:{X+7}], v[{M1+8}:{M1+11}], v[{D}:{D+3}]
    v_mfma_f32_16x16x32_bf16 v[{D+4}:{D+7}], v[{X+4}:{X+7}], v[{M1+12}:{M1+15}], v[{D+4}:{D+7}]
    ''')
    for i in range(3):
        a(f'v_cvt_pk_bf16_f32 v{X+i}, v{D+i}, v{D+4+i}')
        a(f'ds_write_b32 v4, v{X+i} offset:{512*i}')
    a(f'''
    L_b1:
    s_waitcnt lgkmcnt(0)
    s_barrier
    s_cmp_ge_u32 s20, 4
    s_cbranch_scc1 L_cons
    ''')
    a(f'''
    s_cmp_ge_u32 s2, {NPROD}
    s_cbranch_scc1 L_low2
    ''')
    for T in range(3):
        a(f'ds_read_b64 v[{X+2*T}:{X+2*T+1}], v5 offset:{512*T}')
    a(f'ds_read_b32 v{Q+3}, v18')
    a(f'ds_read_b32 v{Q+7}, v18')
    for T in range(3):
        a(f's_waitcnt lgkmcnt({4-T})')
        a(f'v_mfma_f32_16x16x16_bf16 v[{M1+4*T}:{M1+4*T+3}], v[{F2}:{F2+1}], v[{X+2*T}:{X+2*T+1}], 0')
    a('s_waitcnt lgkmcnt(0)')
    for T in range(3):
        for e in range(2):
            a(f'v_cvt_pk_bf16_f32 v{Q+4*e+T}, v{M1+4*T+2*e}, v{M1+4*T+2*e+1}')
    a(f'buffer_store_dwordx4 v[{Q}:{Q+3}], v6, s[16:19], s28 offen sc1')
    a(f'buffer_store_dwordx4 v[{Q+4}:{Q+7}], v6, s[16:19], s29 offen sc1')
    st(a, 2)
    if GATE == 'ack': a('s_waitcnt vmcnt(0)')
    if GATE == 'ack1': a('s_waitcnt vmcnt(1)')
    a(f'''
    L_low2:
    s_barrier
    s_lshl_b32 s21, s20, 8
    s_or_b32 s21, s21, s2
    s_cmp_gt_u32 s21, 1
    s_cbranch_scc1 L_fin
    s_mov_b32 s42, 1024
    s_mov_b32 s43, 1
    s_cmp_eq_u32 s21, 0
    s_cbranch_scc1 L_rdc
    s_waitcnt vmcnt(0)
    s_barrier
    s_mov_b64 exec, 1
    s_mov_b32 s21, {EO}
    buffer_store_dword v{Q+3}, off, s[16:19], s21
    s_mov_b64 exec, -1
    s_branch L_fin
    ''')
    a(f'''
    L_cons:
    v_mov_b32 v4, {LDS_T}
    ds_read_b32 v4, v4
    s_mov_b32 s43, 0
    ''')
    if CPRE < 1: consts()
    if CPRE < 2: setup()
    a(f'''
    s_waitcnt lgkmcnt(0)
    s_cmp_lg_u32 s20, 7
    s_cbranch_scc1 L_b2
    ''')
    a(f'''
    s_cmp_lt_u32 s2, {NPROD}
    s_cbranch_scc1 L_b2
    s_mov_b32 exec_lo, {PMASK}
    s_mov_b32 exec_hi, {PMASK}
    ''')
    st(a, 2)
    a(f'''
    L_gpoll:
    buffer_load_dword v{G0}, v5, s[16:19], s38 offen offset:12 sc1
    s_waitcnt vmcnt(0)
    v_cmp_ne_u32 vcc, v4, v{G0}
    s_cbranch_vccz L_gdone
    s_sleep {SLEEP}
    ''')
    bounded('L_gpoll')
    a(f'''
    L_gdone:
    s_mov_b64 exec, -1
    L_b2:
    s_barrier
    ''')
    st(a, 3)
    LR = [G0, G1]
    def uloads():
        for kh in range(2):
            for k in range(4):
                a(f'buffer_load_dwordx4 v[{LR[kh]+4*k}:{LR[kh]+4*k+3}], v5, s[16:19], s{(38 if k % 2 == 0 else 40)+kh} offen offset:{RS*(k>>1)} sc1')
    uloads()
    T0 = DR
    a('''
    L_rdc:
    v_and_b32 v2, 63, v0
    v_lshlrev_b32 v2, 4, v2
    ''')
    for k in range(16):
        a(f'ds_read_b128 v[{BRE+4*k}:{BRE+4*k+3}], v2 offset:{LDS_C+1024*k}')
    a(f'''
    v_bfe_u32 v{T0}, v0, 5, 1
    v_and_b32 v{T0+1}, 31, v0
    s_and_b32 s25, s20, 3
    s_mul_i32 s21, s25, {VS}
    s_add_u32 s21, s21, {LDS_V+4}
    v_mul_u32_u24 v2, 640, v{T0}
    v_lshl_add_u32 v2, v{T0+1}, 2, v2
    v_add_u32 v2, s21, v2
    v_lshl_add_u32 v7, v{T0+1}, 1, v{T0}
    v_mul_u32_u24 v7, 20, v7
    v_sub_u32 v1, 1260, v7
    s_lshl_b32 s21, s25, 7
    s_add_u32 s21, s21, s42
    s_and_b32 s24, s21, 1023
    s_lshr_b32 s25, s21, 6
    s_sub_u32 s22, 2048, s21
    s_mul_i32 s21, s21, 1280
    s_mul_i32 s22, s22, 1280
    s_mov_b32 s10, {NB}
    s_mov_b32 s11, 0x20000
    s_cmp_eq_u32 s43, 1
    s_cbranch_scc1 L_b3
    s_branch L_wait
    L_retry:
    s_mov_b64 exec, -1
    ''')
    if RSLEEP: a(f's_sleep {RSLEEP}')
    if DIAG: a(f's_add_u32 s{diag.SB+12}, s{diag.SB+12}, 1')
    uloads()
    a('L_wait:')
    for kh in range(2):
        for k in range(4):
            a(f's_waitcnt vmcnt({7-4*kh-k})')
            a(f'v_cmpx_eq_u32 vcc, v4, v{LR[kh]+4*k+3}')
    a('s_cmp_eq_u64 vcc, -1')
    if BOUND:
        a(f'''s_cbranch_scc1 L_go
        s_add_u32 s33, s33, 1
        s_cmp_lt_u32 s33, {BOUND}
        s_cbranch_scc1 L_retry
        s_mov_b64 exec, -1
        L_go:''')
    else:
        a('s_cbranch_scc0 L_retry')
    st(a, 4)
    DA = DR
    for kh in range(2):
        G = LR[kh]
        a(f'''
        v_swap_b32 v{G+1}, v{G+4}
        v_swap_b32 v{G+2}, v{G+8}
        v_mov_b32 v{G+3}, v{G+12}
        v_swap_b32 v{G+6}, v{G+9}
        v_mov_b32 v{G+7}, v{G+13}
        v_mov_b32 v{G+11}, v{G+14}
        ''')
        for T in range(3):
            c = '0' if kh == 0 else f'v[{DA+4*T}:{DA+4*T+3}]'
            a(f'v_mfma_f32_16x16x32_bf16 v[{DA+4*T}:{DA+4*T+3}], v[{MA+4*kh}:{MA+4*kh+3}], v[{G+4*T}:{G+4*T+3}], {c}')
    G = G0
    for T in range(3):
        for pi in range(2):
            a(f'v_cvt_pk_bf16_f32 v{G+8+2*T+pi}, v{DA+4*T+2*pi}, v{DA+4*T+2*pi+1}')
        a(f'ds_write_b64 v6, v[{G+8+2*T}:{G+8+2*T+1}] offset:{LDS_V+8*T}')
    a(f'''
    L_b3:
    v_mov_b32 v{G+5}, 0
    s_waitcnt lgkmcnt(0)
    s_barrier
    ''')
    if DIAG:
        st(a, 5); a('s_waitcnt lgkmcnt(0)')
    a(f'''
    ds_read2_b32 v[{G}:{G+1}], v2 offset0:0 offset1:32
    ds_read2_b32 v[{G+2}:{G+3}], v2 offset0:64 offset1:96
    ds_read_b32 v{G+4}, v2 offset:512
    s_mov_b64 exec, 1
    ds_read_b32 v{G+5}, v2 offset:1280
    s_mov_b64 exec, -1
    s_cmp_lg_u32 s24, 0
    s_cbranch_scc1 L_norm
    s_waitcnt lgkmcnt(0)
    ''')
    for r in range(6):
        a(f'v_bfe_u32 v{G+r}, v{G+r}, s25, 16')
    a('s_nop 1')
    a('L_norm:')
    a('s_waitcnt lgkmcnt(2)')
    a(f'v_mfma_f32_32x32x16_bf16 v[{DR}:{DR+15}], v[{G}:{G+3}], v[{BRE}:{BRE+3}], 0')
    a(f'v_mfma_f32_32x32x16_bf16 v[{DI}:{DI+15}], v[{G}:{G+3}], v[{BIM}:{BIM+3}], 0')
    a('s_waitcnt lgkmcnt(0)')
    a(f'v_mfma_f32_32x32x8_bf16 v[{DR}:{DR+15}], v[{G+4}:{G+5}], v[{BRE+4}:{BRE+5}], v[{DR}:{DR+15}]')
    a(f'v_mfma_f32_32x32x8_bf16 v[{DI}:{DI+15}], v[{G+4}:{G+5}], v[{BIM+4}:{BIM+5}], v[{DI}:{DI+15}]')
    Y = BRE
    TT = MA
    if 'tail' in OPT: st(a, 1)
    for s in range(4):
        if PK:
            for r in (0, 2):
                i = 4 * s + r
                a(f'v_pk_mul_f32 v[{TT+r}:{TT+r+1}], v[{DR+i}:{DR+i+1}], v[{TC+i}:{TC+i+1}]')
            for r in (0, 2):
                i = 4 * s + r
                a(f'v_pk_fma_f32 v[{TT+r}:{TT+r+1}], v[{DI+i}:{DI+i+1}], v[{TS+i}:{TS+i+1}], v[{TT+r}:{TT+r+1}]')
            for r in (0, 2):
                i = 4 * s + r
                a(f'v_pk_mul_f32 v[{DI+i}:{DI+i+1}], v[{DI+i}:{DI+i+1}], v[{TC+i}:{TC+i+1}]')
            for r in (0, 2):
                i = 4 * s + r
                a(f'v_pk_fma_f32 v[{DI+i}:{DI+i+1}], v[{DR+i}:{DR+i+1}], v[{TS+i}:{TS+i+1}], v[{DI+i}:{DI+i+1}] neg_lo:[1,0,0] neg_hi:[1,0,0]')
        else:
            for r in range(4):
                i = 4 * s + r
                ar, ai, t = DR + i, DI + i, TT + r
                a(f'v_mul_f32 v{t}, v{ar}, v{TC+i}')
                a(f'v_fmac_f32 v{t}, v{ai}, v{TS+i}')
                a(f'v_mul_f32 v{ai}, v{ai}, v{TC+i}')
                a(f'v_fma_f32 v{ai}, -v{ar}, v{TS+i}, v{ai}')
        for r in range(4):
            a(f'v_cvt_pk_bf16_f32 v{G+4*s+r}, v{TT+r}, v{DI+4*s+r}')
        c = '0' if s == 0 else f'v[{Y}:{Y+15}]'
        a(f'v_mfma_f32_32x32x16_bf16 v[{Y}:{Y+15}], v[{G+4*s}:{G+4*s+3}], v[{FC+4*s}:{FC+4*s+3}], {c}')
    O1, O2 = TC, TC + 8
    if 'tail' in OPT: st(a, 2)
    for j in range(5):
        a(f'v_cvt_pk_bf16_f32 v{O1+j}, v{Y+2*j}, v{Y+2*j+1}')
    a(f'buffer_store_dwordx4 v[{O1}:{O1+3}], v7, s[8:11], s21 offen')
    a(f'buffer_store_dword v{O1+4}, v7, s[8:11], s21 offen offset:16')
    for j in range(5):
        a(f'v_cvt_pk_bf16_f32 v{O2+j}, v{Y+10-2*j}, v{Y+9-2*j}')
    a(f'''
    s_cmp_eq_u32 s24, 0
    s_cbranch_scc1 L_fin
    buffer_store_dwordx4 v[{O2}:{O2+3}], v1, s[8:11], s22 offen
    buffer_store_dword v{O2+4}, v1, s[8:11], s22 offen offset:16
    ''')
    if 'tail' in OPT: st(a, 6)
    a('L_fin:')
    if DIAG: diag.stamp_store(a, 0, 16, vb=100)
    a('L_end:')
    a('s_endpgm')
    a('L_codeend:')
    return 128

def main(out):
    a = Asm(); nv = kernel(a); a.pad(True)
    s = f'''; FNet spectral mixing via MFMA FFT (single launch, folded input, tagged in-kernel hand-off)
; @launch grid=(256,1,1) block=(512,1,1) lds={LDS_TOTAL}
.amdgcn_target "amdgcn-amd-amdhsa--gfx950"
.text
.globl {KN}
.p2align 8
.type {KN},@function
''' + a.text()
    s += f'''.section .rodata,"a"
.p2align 6
.amdhsa_kernel {KN}
  .amdhsa_next_free_vgpr {nv}
  .amdhsa_next_free_sgpr {96 if DIAG else 48}
  .amdhsa_accum_offset {nv}
  .amdhsa_group_segment_fixed_size 0
  .amdhsa_kernarg_size 64
  .amdhsa_user_sgpr_count 2
  .amdhsa_user_sgpr_kernarg_segment_ptr 1
  .amdhsa_system_sgpr_workgroup_id_x 1
  .amdhsa_float_denorm_mode_32 3
.end_amdhsa_kernel
'''
    open(out, 'w').write(s)

main(sys.argv[1])
```

```python
import sys, struct, math
sys.path.insert(0, 'gen')
from asmlib import Asm
import diag
OPT = dict(a.split('=') for a in sys.argv[2:])
DIAG = 'st' in OPT
PK = int(OPT.get('pk', 1))
SLEEP = int(OPT.get('sleep', 2))
RSLEEP = int(OPT.get('rsleep', 2))
BOUND = int(OPT.get('bound', 0))
HINT = OPT.get('hint', 'x')
MEARLY = int(OPT.get('mearly', 1))
TLB = int(OPT.get('tlb', 0))
GATE = OPT.get('gate', 'ack')
CPRE = int(OPT.get('cpre', 1))
def st(a, k):
    if DIAG: diag.stamp(a, k)
def f32(x):
    return '0x%08x' % struct.unpack('<I', struct.pack('<f', x))[0]

NB = 2621440
NPROD = 224
PAIR = int(OPT.get('pair', 1))
if PAIR:
    RS = 14 * 128; LS = 16 * RS; SEG = 128; HB = 64
else:
    RS = 14 * 64; HB = 16 * RS; LS = 2 * HB; SEG = 64
AK = 64 * LS
EO = AK + 32 * 128
UB = EO + 128
MASTER = 1
TAGC = 0x9E3779B9
PMASK = int(OPT.get('pmask', '0x00010001'), 16)
KN = 'standalone__spectral_fnet__prompt_kernel'
VS = 1344
LDS_V = 8192
LDS_T = LDS_V + 4 * VS
LDS_C = 14336
LDS_TOTAL = LDS_C + 16 * 1024
G0, MA = 8, 24
BRE, BIM, TC, TS, FC = 32, 40, 48, 64, 80
DR, DI = 96, 112
G1 = DI

def kernel(a):
    def bounded(lbl):
        if BOUND:
            a(f'''s_add_u32 s33, s33, 1
            s_cmp_lt_u32 s33, {BOUND}
            s_cbranch_scc1 {lbl}''')
        else:
            a(f's_branch {lbl}')
    a(f'{KN}:')
    if DIAG: diag.init(a)
    st(a, 0)
    X = 8
    M1 = 96
    D = 112
    a(f'''
    s_load_dwordx2 s[4:5], s[0:1], 0
    s_load_dwordx2 s[16:17], s[0:1], 56
    s_load_dwordx2 s[8:9], s[0:1], 40
    s_getpc_b64 s[24:25]
    L_pf:
    v_xor_b32 v1, 448, v0
    v_lshlrev_b32 v1, 6, v1
    s_mov_b32 s26, L_codeend-L_pf
    s_mov_b32 s27, 0x20000
    buffer_load_dword v15, v1, s[24:27], 0 offen
    v_lshrrev_b32 v3, 6, v0
    v_bfe_u32 v2, v0, 4, 2
    v_and_b32 v1, 3, v0
    v_bfe_u32 v7, v0, 2, 2
    s_and_b32 s12, s2, 15
    s_lshr_b32 s13, s2, 4
    s_mul_i32 s14, s13, 12
    v_lshl_add_u32 v4, v2, 5, v3
    v_lshl_add_u32 v4, v4, 4, s12
    v_mul_u32_u24 v4, 1280, v4
    v_min_u32 v5, 2, v1
    v_mad_u32_u24 v5, v7, 3, v5
    v_add_lshl_u32 v5, v5, s14, 2
    v_readfirstlane_b32 s20, v3
    v_cmp_eq_u32 vcc, 0, v5
    v_add3_u32 v16, v4, v5, -2
    s_mov_b32 s6, {NB}
    v_cndmask_b32 v6, v5, v17, vcc
    '''.replace('    v_cndmask_b32 v6, v5, v17, vcc\n', f'    v_mov_b32 v17, 1280\n    v_cndmask_b32 v6, v5, v17, vcc\n'))
    a(f'''
    v_bfrev_b32 v19, 1
    v_cndmask_b32 v16, v16, v19, vcc
    v_add_u32 v4, v4, v6
    v_sub_u32 v17, {1665*1280}, v4
    v_add_u32 v18, {491520}, v17
    v_subrev_u32 v19, {NB}, v18
    v_min_u32 v18, v18, v19
    s_mov_b32 s7, 0x20000
    s_mov_b32 s29, 163840
    s_mov_b32 s30, {2*163840}
    s_mov_b32 s31, {3*163840}
    s_mov_b32 s18, {UB}
    s_mov_b32 s19, 0x20000
    ''')
    TA, TB = 20, 21
    a(f'''
    v_and_b32 v{TA}, 1, v0
    v_lshlrev_b32 v{TA}, 3, v{TA}
    v_lshl_add_u32 v{TA}, v7, 1, v{TA}
    v_bfe_u32 v{TB}, v0, 1, 1
    v_add_u32 v{TA}, v{TA}, v{TB}
    v_cvt_f32_u32 v{TA}, v{TA}
    v_lshl_add_u32 v{TB}, v2, 5, v3
    v_cvt_f32_u32 v{TB}, v{TB}
    v_mul_f32 v{TA}, {f32(1/128)}, v{TA}
    v_mul_f32 v{TB}, v{TB}, v{TA}
    v_mul_f32 v{TA}, {f32(8.0)}, v{TA}
    s_cmp_ge_u32 s2, {NPROD}
    s_waitcnt lgkmcnt(0)
    s_cbranch_scc1 L_nox
    buffer_load_dword v{X}, v16, s[4:7], 0 offen
    buffer_load_dword v{X+1}, v16, s[4:7], s29 offen
    buffer_load_dword v{X+2}, v16, s[4:7], s30 offen
    buffer_load_dword v{X+3}, v16, s[4:7], s31 offen
    buffer_load_dword v{X+4}, v18, s[4:7], 0 offen
    buffer_load_dword v{X+5}, v17, s[4:7], s30 offen
    buffer_load_dword v{X+6}, v17, s[4:7], s29 offen
    buffer_load_dword v{X+7}, v17, s[4:7], 0 offen
    L_nox:
    s_cmp_ge_u32 s2, 256
    s_cbranch_scc1 L_end
    s_mov_b32 s33, 0
    s_cmp_lg_u32 s20, 0
    s_cbranch_scc1 L_noe
    s_mov_b32 s21, {EO}
    s_buffer_load_dword s36, s[16:19], s21
    L_noe:
    ''')
    if TLB:
        a(f'''
        s_cmp_lg_u32 s20, 4
        s_cbranch_scc1 L_notlb
        s_mov_b32 s10, {NB}
        s_mov_b32 s11, 0x20000
        v_and_b32 v22, 63, v0
        v_mul_u32_u24 v22, {40960 if TLB == 1 else 1310720}, v22
        s_mov_b32 s21, {EO}
        s_mov_b64 exec, {-1 if TLB == 1 else 3}
        buffer_load_dword v23, v22, s[8:11], 0 offen
        s_mov_b64 exec, 1
        buffer_load_dword v23, off, s[16:19], s21
        s_mov_b64 exec, -1
        L_notlb:
        ''')
    for r in range(4):
        a(f'v_cos_f32 v{D+2*r}, v{TB}')
        a(f'v_sin_f32 v{D+1+2*r}, v{TB}')
        if r < 3: a(f'v_add_f32 v{TB}, v{TB}, v{TA}')
    a(f'''
    v_and_b32 v4, 1, v7
    v_lshlrev_b32 v4, 1, v4
    v_xor_b32 v4, v4, v2
    v_lshl_add_u32 v4, v1, 2, v4
    v_lshl_add_u32 v4, v7, 8, v4
    s_lshr_b32 s21, s20, 1
    s_lshl_b32 s21, s21, 7
    s_and_b32 s22, s20, 1
    s_lshl_b32 s22, s22, 2
    s_add_u32 s21, s21, s22
    v_lshl_add_u32 v4, v4, 3, s21
    ''')
    for r in range(4):
        c, s_ = D + 2 * r, D + 1 + 2 * r
        a(f'v_cvt_pk_bf16_f32 v{M1+r}, v{c}, v{s_}')
        a(f'v_cvt_pk_bf16_f32 v{M1+4+r}, -v{s_}, v{c}')
        a(f'v_cvt_pk_bf16_f32 v{M1+8+r}, v{s_}, v{c}')
        a(f'v_cvt_pk_bf16_f32 v{M1+12+r}, v{c}, -v{s_}')
    a('''
    s_cmp_ge_u32 s20, 4
    s_cbranch_scc1 L_upper
    ''')
    F2 = 16
    Q = 24
    def hint_store():
        a(f'''
        s_mov_b64 exec, 1
        buffer_store_dword v{Q+3}, off, s[16:19], s26 sc1
        s_mov_b64 exec, -1
        ''')
    a(f'''
    v_bfe_u32 v{TA}, v0, 1, 3
    v_cvt_f32_u32 v{TA}, v{TA}
    v_and_b32 v{TB}, 1, v0
    v_cvt_f32_u32 v{TB}, v{TB}
    v_cvt_f32_u32 v22, v2
    v_mul_f32 v{TA}, {f32(0.125)}, v{TA}
    v_mul_f32 v{TB}, {f32(0.25)}, v{TB}
    v_add_f32 v22, v22, v22
    v_fma_f32 v{TB}, v22, v{TA}, v{TB}
    v_add_f32 v{TA}, v{TA}, v{TB}
    v_cos_f32 v22, v{TB}
    v_sin_f32 v23, v{TB}
    v_cos_f32 v18, v{TA}
    v_sin_f32 v19, v{TA}
    v_and_b32 v5, 63, v0
    s_lshr_b32 s22, s22, 1
    v_xor_b32 v5, s22, v5
    s_lshl_b32 s21, s20, 11
    v_lshl_add_u32 v5, v5, 3, s21
    v_lshl_add_u32 v6, v2, 3, v3
    v_lshrrev_b32 v{TA}, 1, v7
    v_lshl_add_u32 v6, v6, 1, v{TA}
    v_mul_u32_u24 v6, {LS}, v6
    v_and_b32 v{TA}, {7 if PAIR else 3}, v0
    v_lshl_add_u32 v6, v{TA}, 4, v6
    ''')
    if not PAIR:
        a(f'v_and_b32 v{TA}, 1, v7\n v_mul_u32_u24 v{TA}, {HB}, v{TA}\n v_add_u32 v6, v6, v{TA}')
    a(f'''
    v_cvt_pk_bf16_f32 v{F2}, v22, v23
    v_cvt_pk_bf16_f32 v{F2+1}, v18, v19
    v_mov_b32 v18, {LDS_T}
    s_mul_i32 s28, s12, {RS}
    s_mul_i32 s29, s13, {SEG}
    s_add_u32 s28, s28, s29
    s_add_u32 s29, s28, {8*LS}
    s_cmp_lg_u32 s20, 0
    s_cbranch_scc1 L_stage1
    s_lshl_b32 s26, s2, 7
    s_add_u32 s26, s26, {AK - NPROD * 128}
    s_waitcnt lgkmcnt(0)
    s_add_u32 s36, s36, {TAGC}
    v_mov_b32 v{Q+3}, s36
    ds_write_b32 v18, v{Q+3}
    s_cmp_lt_u32 s2, {NPROD}
    s_cbranch_scc1 L_stage1
    s_mov_b64 exec, 1
    buffer_store_dword v{Q+3}, off, s[16:19], s26 sc1
    s_mov_b64 exec, -1
    s_branch L_b1
    ''')

    def consts():
        C0 = 32
        a(f'''
        v_bfe_u32 v{C0}, v0, 5, 1
        v_and_b32 v{C0+1}, 31, v0
        v_and_b32 v{C0+2}, 1, v7
        v_mad_u32_u24 v{C0+2}, v{C0+2}, 10, v1
        v_bfe_u32 v{C0+3}, v0, 3, 2
        v_lshl_add_u32 v{C0+2}, v{C0+3}, 2, v{C0+2}
        s_and_b32 s21, s20, 3
        s_lshl_b32 s22, s21, 1
        v_add_u32 v{C0+4}, s22, v{C0}
        v_mad_u32_u24 v{C0+5}, v{C0}, 5, s21
        v_mad_u32_u24 v{C0}, v{C0}, 5, 4
        s_and_b32 s22, s20, 1
        s_cselect_b64 vcc, -1, 0
        s_cselect_b32 s23, 0.5, 1.0
        v_cvt_f32_u32 v{C0+2}, v{C0+2}
        v_cvt_f32_u32 v{C0+1}, v{C0+1}
        v_cvt_f32_u32 v{C0+4}, v{C0+4}
        v_cndmask_b32 v{C0}, v{C0}, 10, vcc
        v_cvt_f32_u32 v{C0+5}, v{C0+5}
        v_cvt_f32_u32 v{C0}, v{C0}
        v_mul_f32 v{C0+6}, {f32(1/640)}, v{C0+2}
        v_mul_f32 v{C0+2}, {f32(1/20)}, v{C0+2}
        v_mul_f32 v{C0+1}, {f32(1/32)}, v{C0+1}
        v_mul_f32 v{C0+4}, 4.0, v{C0+4}
        v_mul_f32 v{C0+5}, v{C0+5}, v{C0+2}
        v_mul_f32 v{C0}, v{C0}, v{C0+2}
        v_mul_f32 v{C0+7}, v{C0+4}, v{C0+6}
        v_mul_f32 v{C0+4}, v{C0+4}, v{C0+1}
        v_cos_f32 v60, v{C0+5}
        v_sin_f32 v61, v{C0+5}
        v_cos_f32 v62, v{C0}
        v_sin_f32 v63, v{C0}
        v_and_b32 v{C0+3}, 63, v0
        v_lshlrev_b32 v{C0+3}, 4, v{C0+3}
        v_lshl_add_u32 v{C0+2}, s21, 10, v{C0+3}
        v_lshl_add_u32 v{C0+5}, s21, 2, v{C0+3}
        v_lshl_add_u32 v{C0}, s22, 2, v{C0+3}
        ''')
        WC, WS_, WF = 40, 44, 48
        for r in range(4):
            a(f'v_cos_f32 v{WC+r}, v{C0+7}')
            a(f'v_sin_f32 v{WS_+r}, v{C0+7}')
            a(f'v_cos_f32 v{52+2*r}, v{C0+4}')
            a(f'v_sin_f32 v{53+2*r}, v{C0+4}')
            if r < 3:
                a(f'v_add_f32 v{C0+7}, v{C0+7}, v{C0+6}')
                a(f'v_add_f32 v{C0+4}, v{C0+4}, v{C0+1}')
        a(f'''
        v_mul_f32 v62, s23, v62
        v_mul_f32 v63, s23, v63
        v_cvt_pk_bf16_f32 v64, v60, v61
        v_cvt_pk_bf16_f32 v65, -v61, v60
        v_cvt_pk_bf16_f32 v66, v62, v63
        v_cvt_pk_bf16_f32 v67, -v63, v62
        ds_write_b128 v{C0+2}, v[{WC}:{WC+3}] offset:{LDS_C+4*1024}
        ds_write_b128 v{C0+2}, v[{WS_}:{WS_+3}] offset:{LDS_C+8*1024}
        ''')
        for r in range(4):
            a(f'v_cvt_pk_bf16_f32 v{WF+r}, v{52+2*r}, v{53+2*r}')
        a(f'''
        ds_write_b32 v{C0+5}, v64 offset:{LDS_C}
        ds_write_b32 v{C0+5}, v65 offset:{LDS_C+2048}
        ds_write_b32 v{C0}, v66 offset:{LDS_C+1024}
        ds_write_b32 v{C0}, v67 offset:{LDS_C+3072}
        ds_write_b128 v{C0+2}, v[{WF}:{WF+3}] offset:{LDS_C+12*1024}
        ''')
    def uoff(dst, tau, tmp):
        a(f'''
        s_lshr_b32 s{dst}, s{tau}, 4
        s_lshl_b32 s{dst}, s{dst}, 3
        s_and_b32 s{tmp}, s{tau}, 7
        s_or_b32 s{dst}, s{dst}, s{tmp}
        s_mul_i32 s{dst}, s{dst}, {LS}
        s_and_b32 s{tmp}, s{tau}, 8
        s_mul_i32 s{tmp}, s{tmp}, {HB//8}
        s_add_u32 s{dst}, s{dst}, s{tmp}
        s_add_u32 s{dst+1}, s{dst}, {8*RS}
        ''')
    def setup():
        T0 = 68
        a(f'''
        s_lshr_b32 s34, s2, 5
        s_lshl_b32 s34, s34, 3
        s_and_b32 s35, s2, 7
        s_or_b32 s34, s34, s35
        s_bfe_u32 s42, s2, 0x20003
        s_lshl_b32 s42, s42, 9
        s_and_b32 s35, s2, 0xf7
        s_cmp_eq_u32 s35, 16
        s_cselect_b32 s34, 64, s34
        s_cselect_b32 s35, 1024, 0
        s_sub_u32 s42, s42, s35
        s_sub_u32 s35, 128, s34
        s_and_b32 s35, s35, 127
        s_add_u32 s42, s42, s34
        ''')
        uoff(38, 34, 21)
        uoff(40, 35, 21)
        a(f'''
        v_lshl_add_u32 v{T0}, v3, 2, v7
        v_subrev_u32 v{T0}, 16, v{T0}
        v_min_u32 v{T0}, 13, v{T0}
        v_mul_u32_u24 v5, {2*RS}, v2
        v_lshl_add_u32 v5, v{T0}, {SEG.bit_length()-1}, v5
        v_lshl_add_u32 v5, v1, 4, v5
        v_lshl_add_u32 v{T0}, v{T0}, 2, v1
        v_mul_u32_u24 v6, {VS}, v2
        v_mad_u32_u24 v6, v{T0}, 24, v6
        v_and_b32 v{T0+1}, 1, v0
        s_cmp_eq_u32 s2, 0
        s_cselect_b32 s31, 1, 99
        v_and_b32 v{T0+2}, 13, v0
        v_cmp_eq_u32 vcc, s31, v{T0+2}
        v_cvt_f32_u32 v{T0+3}, v2
        v_bfe_u32 v{T0+2}, v0, 1, 1
        v_cndmask_b32 v{T0}, v7, 8, vcc
        v_cndmask_b32 v{T0+1}, v{T0+1}, 0, vcc
        v_lshl_add_u32 v{T0}, v{T0}, 7, s42
        v_cvt_f32_u32 v{T0}, v{T0}
        v_mul_f32 v{T0}, {f32(1/2048)}, v{T0}
        v_add_f32 v{T0+3}, v{T0+3}, v{T0+3}
        v_add_u32 v{T0+1}, v{T0+1}, v{T0+2}
        v_cvt_f32_u32 v{T0+1}, v{T0+1}
        v_mul_f32 v{T0+1}, {f32(0.25)}, v{T0+1}
        v_fma_f32 v{T0+1}, v{T0}, v{T0+3}, v{T0+1}
        v_add_f32 v{T0+3}, v{T0+1}, v{T0}
        v_cos_f32 v{T0+4}, v{T0+1}
        v_sin_f32 v{T0+5}, v{T0+1}
        v_cos_f32 v{T0+6}, v{T0+3}
        v_sin_f32 v{T0+7}, v{T0+3}
        v_fmamk_f32 v{T0+1}, v{T0}, {f32(8.0)}, v{T0+1}
        v_fmamk_f32 v{T0+3}, v{T0}, {f32(8.0)}, v{T0+3}
        v_cos_f32 v{T0+8}, v{T0+1}
        v_sin_f32 v{T0+9}, v{T0+1}
        v_cos_f32 v{T0+10}, v{T0+3}
        v_sin_f32 v{T0+11}, v{T0+3}
        v_lshlrev_b32 v{T0+2}, 4, v{T0+2}
        v_bfrev_b32 v{T0+3}, 1
        v_lshrrev_b32 v{T0+2}, v{T0+2}, v{T0+3}
        ''')
        for k in range(4):
            a(f'v_pk_mul_f32 v[{T0+4+2*k}:{T0+5+2*k}], v[{T0+4+2*k}:{T0+5+2*k}], 0.5 op_sel_hi:[1,0]')
        for k in range(4):
            a(f'v_cvt_pk_bf16_f32 v{MA+2*k}, v{T0+4+2*k}, v{T0+5+2*k}')
        for k in range(4):
            a(f'v_xor_b32 v{MA+2*k+1}, v{MA+2*k}, v{T0+2}')
    a('L_upper:')
    if CPRE >= 1: consts()
    if CPRE >= 2: setup()
    a('''
    L_stage1:
    s_waitcnt vmcnt(0)
    ''')
    st(a, 1)
    a(f'''
    s_cmp_ge_u32 s2, {NPROD}
    s_cbranch_scc1 L_b1
    v_mfma_f32_16x16x32_bf16 v[{D}:{D+3}], v[{X}:{X+3}], v[{M1}:{M1+3}], 0
    v_mfma_f32_16x16x32_bf16 v[{D+4}:{D+7}], v[{X}:{X+3}], v[{M1+4}:{M1+7}], 0
    v_mfma_f32_16x16x32_bf16 v[{D}:{D+3}], v[{X+4}:{X+7}], v[{M1+8}:{M1+11}], v[{D}:{D+3}]
    v_mfma_f32_16x16x32_bf16 v[{D+4}:{D+7}], v[{X+4}:{X+7}], v[{M1+12}:{M1+15}], v[{D+4}:{D+7}]
    ''')
    for i in range(3):
        a(f'v_cvt_pk_bf16_f32 v{X+i}, v{D+i}, v{D+4+i}')
        a(f'ds_write_b32 v4, v{X+i} offset:{512*i}')
    a(f'''
    L_b1:
    s_waitcnt lgkmcnt(0)
    s_barrier
    s_cmp_ge_u32 s20, 4
    s_cbranch_scc1 L_cons
    ''')
    a(f'''
    s_cmp_ge_u32 s2, {NPROD}
    s_cbranch_scc1 L_low2
    ''')
    for T in range(3):
        a(f'ds_read_b64 v[{X+2*T}:{X+2*T+1}], v5 offset:{512*T}')
    a(f'ds_read_b32 v{Q+3}, v18')
    a(f'ds_read_b32 v{Q+7}, v18')
    for T in range(3):
        a(f's_waitcnt lgkmcnt({4-T})')
        a(f'v_mfma_f32_16x16x16_bf16 v[{M1+4*T}:{M1+4*T+3}], v[{F2}:{F2+1}], v[{X+2*T}:{X+2*T+1}], 0')
    a('s_waitcnt lgkmcnt(0)')
    for T in range(3):
        for e in range(2):
            a(f'v_cvt_pk_bf16_f32 v{Q+4*e+T}, v{M1+4*T+2*e}, v{M1+4*T+2*e+1}')
    a(f'buffer_store_dwordx4 v[{Q}:{Q+3}], v6, s[16:19], s28 offen sc1')
    a(f'buffer_store_dwordx4 v[{Q+4}:{Q+7}], v6, s[16:19], s29 offen sc1')
    st(a, 2)
    if GATE == 'ack': a('s_waitcnt vmcnt(0)')
    if GATE == 'ack1': a('s_waitcnt vmcnt(1)')
    a(f'''
    L_low2:
    s_barrier
    s_lshl_b32 s21, s20, 8
    s_or_b32 s21, s21, s2
    s_cmp_gt_u32 s21, 1
    s_cbranch_scc1 L_fin
    s_mov_b32 s42, 1024
    s_mov_b32 s43, 1
    s_cmp_eq_u32 s21, 0
    s_cbranch_scc1 L_rdc
    v_lshlrev_b32 v5, 7, v0
    s_mov_b32 s21, {AK}
    s_mov_b32 exec_hi, 0
    buffer_load_dword v8, v5, s[16:19], s21 offen sc1
    s_barrier
    L_apoll:
    s_waitcnt vmcnt(0)
    v_cmp_ne_u32 vcc, s36, v8
    s_cbranch_vccz L_adone
    s_sleep {SLEEP}
    buffer_load_dword v8, v5, s[16:19], s21 offen sc1
    ''')
    bounded('L_apoll')
    a(f'''
    L_adone:
    s_mov_b64 exec, 1
    s_mov_b32 s21, {EO}
    buffer_store_dword v{Q+3}, off, s[16:19], s21
    s_mov_b64 exec, -1
    s_branch L_fin
    ''')
    a(f'''
    L_cons:
    v_mov_b32 v4, {LDS_T}
    ds_read_b32 v4, v4
    s_mov_b32 s43, 0
    ''')
    if CPRE < 1: consts()
    if CPRE < 2: setup()
    a(f'''
    s_waitcnt lgkmcnt(0)
    s_cmp_lg_u32 s20, 7
    s_cbranch_scc1 L_b2
    ''')
    a(f'''
    s_cmp_lt_u32 s2, {NPROD}
    s_cbranch_scc1 L_b2
    s_mov_b32 exec_lo, {PMASK}
    s_mov_b32 exec_hi, {PMASK}
    ''')
    st(a, 2)
    a(f'''
    L_gpoll:
    buffer_load_dword v{G0}, v5, s[16:19], s38 offen offset:12 sc1
    s_waitcnt vmcnt(0)
    v_cmp_ne_u32 vcc, v4, v{G0}
    s_cbranch_vccz L_gdone
    s_sleep {SLEEP}
    ''')
    bounded('L_gpoll')
    a(f'''
    L_gdone:
    s_mov_b64 exec, -1
    L_b2:
    s_barrier
    ''')
    st(a, 3)
    LR = [G0, G1]
    def uloads():
        for kh in range(2):
            for k in range(4):
                a(f'buffer_load_dwordx4 v[{LR[kh]+4*k}:{LR[kh]+4*k+3}], v5, s[16:19], s{(38 if k % 2 == 0 else 40)+kh} offen offset:{RS*(k>>1)} sc1')
    uloads()
    T0 = DR
    a('''
    L_rdc:
    v_and_b32 v2, 63, v0
    v_lshlrev_b32 v2, 4, v2
    ''')
    for k in range(16):
        a(f'ds_read_b128 v[{BRE+4*k}:{BRE+4*k+3}], v2 offset:{LDS_C+1024*k}')
    a(f'''
    v_bfe_u32 v{T0}, v0, 5, 1
    v_and_b32 v{T0+1}, 31, v0
    s_and_b32 s25, s20, 3
    s_mul_i32 s21, s25, {VS}
    s_add_u32 s21, s21, {LDS_V+4}
    v_mul_u32_u24 v2, 640, v{T0}
    v_lshl_add_u32 v2, v{T0+1}, 2, v2
    v_add_u32 v2, s21, v2
    v_lshl_add_u32 v7, v{T0+1}, 1, v{T0}
    v_mul_u32_u24 v7, 20, v7
    v_sub_u32 v1, 1260, v7
    s_lshl_b32 s21, s25, 7
    s_add_u32 s21, s21, s42
    s_and_b32 s24, s21, 1023
    s_lshr_b32 s25, s21, 6
    s_sub_u32 s22, 2048, s21
    s_mul_i32 s21, s21, 1280
    s_mul_i32 s22, s22, 1280
    s_mov_b32 s10, {NB}
    s_mov_b32 s11, 0x20000
    s_cmp_eq_u32 s43, 1
    s_cbranch_scc1 L_b3
    s_branch L_wait
    L_retry:
    s_mov_b64 exec, -1
    ''')
    if RSLEEP: a(f's_sleep {RSLEEP}')
    if DIAG: a(f's_add_u32 s{diag.SB+12}, s{diag.SB+12}, 1')
    uloads()
    a('L_wait:')
    for kh in range(2):
        for k in range(4):
            a(f's_waitcnt vmcnt({7-4*kh-k})')
            a(f'v_cmpx_eq_u32 vcc, v4, v{LR[kh]+4*k+3}')
    a('s_cmp_eq_u64 vcc, -1')
    if BOUND:
        a(f'''s_cbranch_scc1 L_go
        s_add_u32 s33, s33, 1
        s_cmp_lt_u32 s33, {BOUND}
        s_cbranch_scc1 L_retry
        s_mov_b64 exec, -1
        L_go:''')
    else:
        a('s_cbranch_scc0 L_retry')
    st(a, 4)
    DA = DR
    for kh in range(2):
        G = LR[kh]
        a(f'''
        v_swap_b32 v{G+1}, v{G+4}
        v_swap_b32 v{G+2}, v{G+8}
        v_mov_b32 v{G+3}, v{G+12}
        v_swap_b32 v{G+6}, v{G+9}
        v_mov_b32 v{G+7}, v{G+13}
        v_mov_b32 v{G+11}, v{G+14}
        ''')
        for T in range(3):
            c = '0' if kh == 0 else f'v[{DA+4*T}:{DA+4*T+3}]'
            a(f'v_mfma_f32_16x16x32_bf16 v[{DA+4*T}:{DA+4*T+3}], v[{MA+4*kh}:{MA+4*kh+3}], v[{G+4*T}:{G+4*T+3}], {c}')
    G = G0
    for T in range(3):
        for pi in range(2):
            a(f'v_cvt_pk_bf16_f32 v{G+8+2*T+pi}, v{DA+4*T+2*pi}, v{DA+4*T+2*pi+1}')
        a(f'ds_write_b64 v6, v[{G+8+2*T}:{G+8+2*T+1}] offset:{LDS_V+8*T}')
    a(f'''
    L_b3:
    v_mov_b32 v{G+5}, 0
    s_waitcnt lgkmcnt(0)
    s_barrier
    ''')
    if DIAG:
        st(a, 5); a('s_waitcnt lgkmcnt(0)')
    a(f'''
    ds_read2_b32 v[{G}:{G+1}], v2 offset0:0 offset1:32
    ds_read2_b32 v[{G+2}:{G+3}], v2 offset0:64 offset1:96
    ds_read_b32 v{G+4}, v2 offset:512
    s_mov_b64 exec, 1
    ds_read_b32 v{G+5}, v2 offset:1280
    s_mov_b64 exec, -1
    s_cmp_lg_u32 s24, 0
    s_cbranch_scc1 L_norm
    s_waitcnt lgkmcnt(0)
    ''')
    for r in range(6):
        a(f'v_bfe_u32 v{G+r}, v{G+r}, s25, 16')
    a('s_nop 1')
    a('L_norm:')
    a('s_waitcnt lgkmcnt(2)')
    a(f'v_mfma_f32_32x32x16_bf16 v[{DR}:{DR+15}], v[{G}:{G+3}], v[{BRE}:{BRE+3}], 0')
    a(f'v_mfma_f32_32x32x16_bf16 v[{DI}:{DI+15}], v[{G}:{G+3}], v[{BIM}:{BIM+3}], 0')
    a('s_waitcnt lgkmcnt(0)')
    a(f'v_mfma_f32_32x32x8_bf16 v[{DR}:{DR+15}], v[{G+4}:{G+5}], v[{BRE+4}:{BRE+5}], v[{DR}:{DR+15}]')
    a(f'v_mfma_f32_32x32x8_bf16 v[{DI}:{DI+15}], v[{G+4}:{G+5}], v[{BIM+4}:{BIM+5}], v[{DI}:{DI+15}]')
    Y = BRE
    TT = MA
    if 'tail' in OPT: st(a, 1)
    for s in range(4):
        if PK:
            for r in (0, 2):
                i = 4 * s + r
                a(f'v_pk_mul_f32 v[{TT+r}:{TT+r+1}], v[{DR+i}:{DR+i+1}], v[{TC+i}:{TC+i+1}]')
            for r in (0, 2):
                i = 4 * s + r
                a(f'v_pk_fma_f32 v[{TT+r}:{TT+r+1}], v[{DI+i}:{DI+i+1}], v[{TS+i}:{TS+i+1}], v[{TT+r}:{TT+r+1}]')
            for r in (0, 2):
                i = 4 * s + r
                a(f'v_pk_mul_f32 v[{DI+i}:{DI+i+1}], v[{DI+i}:{DI+i+1}], v[{TC+i}:{TC+i+1}]')
            for r in (0, 2):
                i = 4 * s + r
                a(f'v_pk_fma_f32 v[{DI+i}:{DI+i+1}], v[{DR+i}:{DR+i+1}], v[{TS+i}:{TS+i+1}], v[{DI+i}:{DI+i+1}] neg_lo:[1,0,0] neg_hi:[1,0,0]')
        else:
            for r in range(4):
                i = 4 * s + r
                ar, ai, t = DR + i, DI + i, TT + r
                a(f'v_mul_f32 v{t}, v{ar}, v{TC+i}')
                a(f'v_fmac_f32 v{t}, v{ai}, v{TS+i}')
                a(f'v_mul_f32 v{ai}, v{ai}, v{TC+i}')
                a(f'v_fma_f32 v{ai}, -v{ar}, v{TS+i}, v{ai}')
        for r in range(4):
            a(f'v_cvt_pk_bf16_f32 v{G+4*s+r}, v{TT+r}, v{DI+4*s+r}')
        c = '0' if s == 0 else f'v[{Y}:{Y+15}]'
        a(f'v_mfma_f32_32x32x16_bf16 v[{Y}:{Y+15}], v[{G+4*s}:{G+4*s+3}], v[{FC+4*s}:{FC+4*s+3}], {c}')
    O1, O2 = TC, TC + 8
    if 'tail' in OPT: st(a, 2)
    for j in range(5):
        a(f'v_cvt_pk_bf16_f32 v{O1+j}, v{Y+2*j}, v{Y+2*j+1}')
    a(f'buffer_store_dwordx4 v[{O1}:{O1+3}], v7, s[8:11], s21 offen')
    a(f'buffer_store_dword v{O1+4}, v7, s[8:11], s21 offen offset:16')
    for j in range(5):
        a(f'v_cvt_pk_bf16_f32 v{O2+j}, v{Y+10-2*j}, v{Y+9-2*j}')
    a(f'''
    s_cmp_eq_u32 s24, 0
    s_cbranch_scc1 L_fin
    buffer_store_dwordx4 v[{O2}:{O2+3}], v1, s[8:11], s22 offen
    buffer_store_dword v{O2+4}, v1, s[8:11], s22 offen offset:16
    ''')
    if 'tail' in OPT: st(a, 6)
    a('L_fin:')
    if DIAG: diag.stamp_store(a, 0, 16, vb=100)
    a('L_end:')
    a('s_endpgm')
    a('L_codeend:')
    return 128

def main(out):
    a = Asm(); nv = kernel(a); a.pad(True)
    s = f'''; FNet spectral mixing via MFMA FFT (single launch, folded input, tagged in-kernel hand-off)
; @launch grid=(256,1,1) block=(512,1,1) lds={LDS_TOTAL}
.amdgcn_target "amdgcn-amd-amdhsa--gfx950"
.text
.globl {KN}
.p2align 8
.type {KN},@function
''' + a.text()
    s += f'''.section .rodata,"a"
.p2align 6
.amdhsa_kernel {KN}
  .amdhsa_next_free_vgpr {nv}
  .amdhsa_next_free_sgpr {96 if DIAG else 48}
  .amdhsa_accum_offset {nv}
  .amdhsa_group_segment_fixed_size 0
  .amdhsa_kernarg_size 64
  .amdhsa_user_sgpr_count 2
  .amdhsa_user_sgpr_kernarg_segment_ptr 1
  .amdhsa_system_sgpr_workgroup_id_x 1
  .amdhsa_float_denorm_mode_32 3
.end_amdhsa_kernel
'''
    open(out, 'w').write(s)

main(sys.argv[1])
```

```python
import sys, struct, math
sys.path.insert(0, 'gen')
from asmlib import Asm
import diag
OPT = dict(a.split('=') for a in sys.argv[2:])
DIAG = 'st' in OPT
RSLEEP = int(OPT.get('rsleep', 0))
BOUND = int(OPT.get('bound', 0))
GATE = OPT.get('gate', 'ack')
MASK = int(OPT.get('mask', 1))
PERM = int(OPT.get('perm', 1))
ILV = int(OPT.get('ilv', 1))
X4 = int(OPT.get('x4', 1))
ALIGNG = int(OPT.get('aligng', 1))
def st(a, k):
    if DIAG: diag.stamp(a, k)
def f32(x):
    return '0x%08x' % struct.unpack('<I', struct.pack('<f', x))[0]

NB = 2621440
TS_ = 16384 + int(OPT.get('padl', 0))
EO = 128 * TS_
UB = EO + 128
TAGC = 0x9E3779B9
KN = 'standalone__spectral_fnet__prompt_kernel'
VS = 1408
VOFF = 23 if ALIGNG else 1
LDS_V = 8192
LDS_C = 14336
LDS_TOTAL = LDS_C + 15 * 1024
G0, MA, G1, DA = 8, 24, 112, 96
FC, TC, TS, BM = 32, 68, 80, 92

def kernel(a):
    a(f'{KN}:')
    if DIAG: diag.init(a)
    st(a, 0)
    X, M1, D = 8, 96, 112
    TA, TB = 20, 21
    a(f'''
    s_load_dwordx2 s[4:5], s[0:1], 0
    s_load_dwordx2 s[16:17], s[0:1], 56
    s_load_dwordx2 s[8:9], s[0:1], 40
    s_getpc_b64 s[24:25]
    L_pf:
    v_xor_b32 v1, 448, v0
    v_lshlrev_b32 v1, 6, v1
    s_mov_b32 s26, L_codeend-L_pf
    s_mov_b32 s27, 0x20000
    buffer_load_dword v15, v1, s[24:27], 0 offen
    v_lshrrev_b32 v3, 6, v0
    v_bfe_u32 v2, v0, 4, 2
    v_and_b32 v1, 3, v0
    v_bfe_u32 v7, v0, 2, 2
    s_and_b32 s12, s2, 15
    s_lshr_b32 s13, s2, 4
    s_mul_i32 s14, s13, 10
    ''')
    if ALIGNG:
        a('''
        s_mul_i32 s15, s13, 43
        s_add_u32 s15, s15, 86
        s_lshr_b32 s15, s15, 7
        s_lshl1_add_u32 s14, s15, s14
        s_sub_u32 s14, s14, 11
        ''')
        if ALIGNG == 2: a('s_max_i32 s14, s14, 0')
    a(f'''
    v_lshl_add_u32 v{TB}, v2, 5, v3
    v_lshl_add_u32 v4, v{TB}, 4, s12
    v_mul_u32_u24 v4, 1280, v4
    v_min_u32 v5, 2, v1
    v_mad_u32_u24 v5, v7, 3, v5
    v_add_lshl_u32 v5, v5, s14, 2
    v_readfirstlane_b32 s20, v3
    v_cmp_eq_u32 vcc, 0, v5
    v_add_u32 v6, -2, v5
    v_mov_b32 v17, 1280
    s_brev_b32 s43, 1
    v_and_b32 v6, 0x80000fff, v6
    v_add_u32 v16, v4, v6
    v_cndmask_b32 v6, v5, v17, vcc
    v_add_u32 v4, v4, v6
    v_sub_u32 v17, {1665*1280}, v4
    v_add_u32 v18, {491520}, v17
    v_subrev_u32 v19, {NB}, v18
    v_min_u32 v18, v18, v19
    v_and_or_b32 v17, v5, s43, v17
    v_and_or_b32 v18, v5, s43, v18
    s_mov_b32 s6, {NB}
    s_mov_b32 s7, 0x20000
    s_mov_b32 s29, 163840
    s_mov_b32 s30, {2*163840}
    s_mov_b32 s31, {3*163840}
    s_mov_b32 s18, {UB}
    s_mov_b32 s19, 0x20000
    v_and_b32 v22, 15, v0
    ''')
    if PERM:
        a(f'v_and_b32 v{TA}, 1, v0\n v_lshlrev_b32 v{TA}, 3, v{TA}\n v_bfe_u32 v23, v0, 1, 3\n v_add_u32 v{TA}, v{TA}, v23\n v_cvt_f32_u32 v{TA}, v{TA}')
    else:
        a(f'v_cvt_f32_u32 v{TA}, v22')
    a(f'''
    v_cvt_f32_u32 v{TB}, v{TB}
    v_mul_f32 v{TA}, {f32(1/128)}, v{TA}
    v_mul_f32 v{TB}, v{TB}, v{TA}
    v_mul_f32 v{TA}, {f32(8.0)}, v{TA}
    s_cmp_ge_u32 s2, 256
    s_cbranch_scc1 L_end
    s_mov_b32 s21, {EO}
    s_waitcnt lgkmcnt(0)
    buffer_load_dword v{X}, v16, s[4:7], 0 offen
    buffer_load_dword v{X+1}, v16, s[4:7], s29 offen
    buffer_load_dword v{X+2}, v16, s[4:7], s30 offen
    buffer_load_dword v{X+3}, v16, s[4:7], s31 offen
    buffer_load_dword v{X+4}, v18, s[4:7], 0 offen
    buffer_load_dword v{X+5}, v17, s[4:7], s30 offen
    buffer_load_dword v{X+6}, v17, s[4:7], s29 offen
    buffer_load_dword v{X+7}, v17, s[4:7], 0 offen
    s_buffer_load_dword s36, s[16:19], s21
    s_mov_b32 s33, 0
    ''')
    for r in range(4):
        a(f'v_cos_f32 v{D+2*r}, v{TB}')
        a(f'v_sin_f32 v{D+1+2*r}, v{TB}')
        if r < 3: a(f'v_add_f32 v{TB}, v{TB}, v{TA}')
    a(f'''
    v_and_b32 v4, 1, v7
    v_lshlrev_b32 v4, 1, v4
    v_xor_b32 v4, v4, v2
    v_lshl_add_u32 v4, v1, 2, v4
    v_lshl_add_u32 v4, v7, 8, v4
    s_lshr_b32 s21, s20, 1
    s_lshl_b32 s21, s21, 7
    s_and_b32 s22, s20, 1
    s_lshl_b32 s22, s22, 2
    s_add_u32 s21, s21, s22
    v_lshl_add_u32 v4, v4, 3, s21
    ''')
    dec = f'''s_lshr_b32 s34, s2, 5
        s_lshl_b32 s34, s34, 3
        s_and_b32 s35, s2, 7
        s_or_b32 s34, s34, s35
        s_bfe_u32 s42, s2, 0x20003
        s_lshl_b32 s42, s42, 9
        s_and_b32 s35, s2, 0xf7
        s_cmp_eq_u32 s35, 16
        s_cselect_b32 s34, 64, s34
        s_cselect_b32 s35, 1024, 0
        s_sub_u32 s42, s42, s35
        s_add_u32 s42, s42, s34'''.split('\n')
    for r in range(4):
        c, s_ = D + 2 * r, D + 1 + 2 * r
        a(f'v_cvt_pk_bf16_f32 v{M1+r}, v{c}, v{s_}')
        a(dec[3*r])
        a(f'v_cvt_pk_bf16_f32 v{M1+4+r}, -v{s_}, v{c}')
        a(dec[3*r+1])
        a(f'v_cvt_pk_bf16_f32 v{M1+8+r}, v{s_}, v{c}')
        a(dec[3*r+2])
        a(f'v_cvt_pk_bf16_f32 v{M1+12+r}, v{c}, -v{s_}')
    a('''
    s_cmp_ge_u32 s20, 4
    s_cbranch_scc1 L_upper
    ''')
    F2, Q = 16, 24
    a(f'''
    v_bfe_u32 v{TA}, v0, 1, 3
    v_cvt_f32_u32 v{TA}, v{TA}
    v_and_b32 v{TB}, 1, v0
    v_cvt_f32_u32 v{TB}, v{TB}
    v_cvt_f32_u32 v22, v2
    v_mul_f32 v{TA}, {f32(0.125)}, v{TA}
    v_mul_f32 v{TB}, {f32(0.25)}, v{TB}
    v_add_f32 v22, v22, v22
    v_fma_f32 v{TB}, v22, v{TA}, v{TB}
    v_add_f32 v{TA}, v{TA}, v{TB}
    v_cos_f32 v22, v{TB}
    v_sin_f32 v23, v{TB}
    v_cos_f32 v18, v{TA}
    v_sin_f32 v19, v{TA}
    v_and_b32 v5, 63, v0
    s_lshr_b32 s22, s22, 1
    v_xor_b32 v5, s22, v5
    s_lshl_b32 s21, s20, 11
    v_lshl_add_u32 v5, v5, 3, s21
    v_lshl_add_u32 v6, v2, 3, v3
    v_lshl_add_u32 v6, v6, 2, v7
    v_mul_u32_u24 v6, {TS_}, v6
    v_lshl_add_u32 v6, v1, 4, v6
    v_cvt_pk_bf16_f32 v{F2}, v22, v23
    v_cvt_pk_bf16_f32 v{F2+1}, v18, v19
    s_lshl_b32 s28, s12, 10
    s_lshl_b32 s29, s13, 6
    s_add_u32 s28, s28, s29
    s_add_u32 s29, s28, {16*TS_}
    s_branch L_stage1
    ''')
    C0 = 32; CC = 40; CS = 52
    a(f'''
    L_upper:
    s_and_b32 s21, s20, 3
    s_lshl_b32 s22, s21, 4
    s_cmp_eq_u32 s21, 3
    s_cselect_b32 s22, 0, s22
    s_mov_b32 s23, {f32(1/40)}
    s_cselect_b32 s23, {f32(1/640)}, s23
    v_add_u32 v{C0}, s22, v22
    v_cvt_f32_u32 v{C0}, v{C0}
    v_cvt_f32_u32 v{C0+1}, v2
    v_mul_f32 v{C0}, s23, v{C0}
    v_add_f32 v{C0+1}, v{C0+1}, v{C0+1}
    v_mul_f32 v{C0+1}, v{C0+1}, v{C0}
    v_add_f32 v{C0+2}, v{C0+1}, v{C0+1}
    v_fmamk_f32 v{C0+1}, v{C0}, {f32(32.0)}, v{C0+1}
    v_fmamk_f32 v{C0+3}, v{C0}, {f32(16.0)}, v{C0+2}
    v_and_b32 v{C0+4}, 63, v0
    s_mul_i32 s22, s21, 3072
    v_lshl_add_u32 v{C0+4}, v{C0+4}, 4, s22
    ''')
    for i in range(4):
        for base, off in ((C0 + 2, 0), (C0 + 3, 4), (C0 + 1, 8)):
            if off == 8 and i >= 2: continue
            a(f'v_cos_f32 v{CC+off+i}, v{base}')
            a(f'v_sin_f32 v{CS+off+i}, v{base}')
            if i < (1 if off == 8 else 3): a(f'v_add_f32 v{base}, v{base}, v{C0}')
    a('s_cbranch_scc1 L_craw')
    for j in range(10):
        a(f'v_cvt_pk_bf16_f32 v{CC+j}, v{CC+j}, v{CS+j}')
    a('s_branch L_cw')
    a('L_craw:')
    for k in range(3):
        a(f'ds_write_b128 v{C0+4}, v[{CS+4*k}:{CS+4*k+3}] offset:{LDS_C+3072+1024*k}')
    a('L_cw:')
    for k in range(3):
        a(f'ds_write_b128 v{C0+4}, v[{CC+4*k}:{CC+4*k+3}] offset:{LDS_C+1024*k}')
    a(f'''
    L_stage1:
    s_waitcnt vmcnt(4)
    v_mfma_f32_16x16x32_bf16 v[{D}:{D+3}], v[{X}:{X+3}], v[{M1}:{M1+3}], 0
    v_mfma_f32_16x16x32_bf16 v[{D+4}:{D+7}], v[{X}:{X+3}], v[{M1+4}:{M1+7}], 0
    s_waitcnt vmcnt(0)
    ''')
    st(a, 1)
    a(f'''
    v_mfma_f32_16x16x32_bf16 v[{D}:{D+3}], v[{X+4}:{X+7}], v[{M1+8}:{M1+11}], v[{D}:{D+3}]
    v_mfma_f32_16x16x32_bf16 v[{D+4}:{D+7}], v[{X+4}:{X+7}], v[{M1+12}:{M1+15}], v[{D+4}:{D+7}]
    s_cmp_ge_u32 s20, 4
    ''')
    for i in range(3):
        a(f'v_cvt_pk_bf16_f32 v{X+i}, v{D+i}, v{D+4+i}')
        a(f'ds_write_b32 v4, v{X+i} offset:{512*i}')
    a(f'''
    s_waitcnt lgkmcnt(0)
    s_barrier
    s_cbranch_scc1 L_cons
    ''')
    for T in range(3):
        a(f'ds_read_b64 v[{X+2*T}:{X+2*T+1}], v5 offset:{512*T}')
    a(f's_add_u32 s36, s36, {TAGC}')
    a(f'v_mov_b32 v{Q+3}, s36')
    a(f'v_mov_b32 v{Q+7}, s36')
    for T in range(3):
        a(f's_waitcnt lgkmcnt({2-T})')
        a(f'v_mfma_f32_16x16x16_bf16 v[{M1+4*T}:{M1+4*T+3}], v[{F2}:{F2+1}], v[{X+2*T}:{X+2*T+1}], 0')
    for T in range(2):
        for e in range(2):
            a(f'v_cvt_pk_bf16_f32 v{Q+4*e+T}, v{M1+4*T+2*e}, v{M1+4*T+2*e+1}')
    for e in range(2):
        a(f'v_cvt_pk_bf16_f32 v{Q+4*e+2}, v{M1+8+2*e}, v{M1+8+2*e+1}')
        a(f'buffer_store_dwordx4 v[{Q+4*e}:{Q+4*e+3}], v6, s[16:19], s{28+e} offen sc1')
    st(a, 2)
    if GATE == 'ack': a('s_waitcnt vmcnt(0)')
    a('''
    s_barrier
    s_or_b32 s22, s20, s2
    s_cbranch_scc1 L_fin
    s_mov_b32 s42, 1024
    s_branch L_rdc
    ''')
    T0 = 68
    a(f'''
    L_cons:
    s_add_u32 s36, s36, {TAGC}
    s_sub_u32 s35, 128, s34
    s_and_b32 s35, s35, 127
    ''')
    if PERM:
        for d, t in ((38, 34), (40, 35)):
            a(f's_and_b32 s{d}, s{t}, 0x70\n s_and_b32 s21, s{t}, 7\n s_lshl1_add_u32 s{d}, s21, s{d}\n s_bfe_u32 s21, s{t}, 0x10003\n s_add_u32 s{d}, s{d}, s21\n s_mul_i32 s{d}, s{d}, {TS_}')
    else:
        a(f's_mul_i32 s38, s34, {TS_}\n s_mul_i32 s40, s35, {TS_}')
    a(f'''
    s_add_u32 s39, s38, 8192
    s_add_u32 s41, s40, 8192
    v_and_b32 v{T0}, 3, v3
    v_lshlrev_b32 v5, 11, v2
    v_lshl_add_u32 v5, v{T0}, 8, v5
    v_lshl_add_u32 v5, v22, 4, v5
    v_lshl_add_u32 v{T0}, v{T0}, 2, v7
    v_mul_u32_u24 v6, {VS}, v2
    v_mad_u32_u24 v6, v1, 24, v6
    ''')
    if ALIGNG:
        a(f'''
        v_mul_u32_u24 v{T0+1}, 43, v{T0}
        v_add_u32 v{T0+1}, 86, v{T0+1}
        v_lshrrev_b32 v{T0+1}, 7, v{T0+1}
        v_lshl_add_u32 v6, v{T0+1}, 4, v6
        ''')
    a(f'''
    v_mul_u32_u24 v{T0}, 80, v{T0}
    ''')
    if ALIGNG == 2:
        a(f'v_cmp_eq_u32 vcc, 0, v{T0}\n v_mov_b32 v{T0+1}, 88\n v_cndmask_b32 v{T0}, v{T0}, v{T0+1}, vcc')
    a(f'''
    v_add_u32 v6, v6, v{T0}
    v_and_b32 v{T0+1}, 1, v0
    s_cmp_eq_u32 s2, 0
    s_cselect_b32 s31, 1, 99
    v_and_b32 v{T0+2}, 13, v0
    v_cmp_eq_u32 vcc, s31, v{T0+2}
    v_cvt_f32_u32 v{T0+3}, v2
    v_bfe_u32 v{T0+2}, v0, 1, 1
    v_cndmask_b32 v{T0}, v7, 8, vcc
    v_cndmask_b32 v{T0+1}, v{T0+1}, 0, vcc
    v_lshl_add_u32 v{T0}, v{T0}, 7, s42
    v_cvt_f32_u32 v{T0}, v{T0}
    v_mul_f32 v{T0}, {f32(1/2048)}, v{T0}
    v_add_f32 v{T0+3}, v{T0+3}, v{T0+3}
    v_add_u32 v{T0+1}, v{T0+1}, v{T0+2}
    v_cvt_f32_u32 v{T0+1}, v{T0+1}
    v_mul_f32 v{T0+1}, {f32(0.25)}, v{T0+1}
    v_fma_f32 v{T0+1}, v{T0}, v{T0+3}, v{T0+1}
    v_add_f32 v{T0+3}, v{T0+1}, v{T0}
    v_cos_f32 v{T0+4}, v{T0+1}
    v_sin_f32 v{T0+5}, v{T0+1}
    v_cos_f32 v{T0+6}, v{T0+3}
    v_sin_f32 v{T0+7}, v{T0+3}
    v_fmamk_f32 v{T0+1}, v{T0}, {f32(8.0)}, v{T0+1}
    v_fmamk_f32 v{T0+3}, v{T0}, {f32(8.0)}, v{T0+3}
    v_cos_f32 v{T0+8}, v{T0+1}
    v_sin_f32 v{T0+9}, v{T0+1}
    v_cos_f32 v{T0+10}, v{T0+3}
    v_sin_f32 v{T0+11}, v{T0+3}
    v_lshlrev_b32 v{T0+2}, 4, v{T0+2}
    v_lshrrev_b32 v{T0+2}, v{T0+2}, s43
    ''')
    for k in range(4):
        a(f'v_pk_mul_f32 v[{T0+4+2*k}:{T0+5+2*k}], v[{T0+4+2*k}:{T0+5+2*k}], 0.5 op_sel_hi:[1,0]')
    for k in range(4):
        a(f'v_cvt_pk_bf16_f32 v{MA+2*k}, v{T0+4+2*k}, v{T0+5+2*k}')
    for k in range(4):
        a(f'v_xor_b32 v{MA+2*k+1}, v{MA+2*k}, v{T0+2}')
    a('s_barrier')
    st(a, 3)
    LR = [G0, G1]
    def uloads(kh):
        for k in range(4):
            a(f'buffer_load_dwordx4 v[{LR[kh]+4*k}:{LR[kh]+4*k+3}], v5, s[16:19], s{(38 if k % 2 == 0 else 40)+kh} offen offset:{1024*(k>>1)} sc1')
    uloads(0); uloads(1)
    T0 = DA
    a(f'''
    L_rdc:
    v_and_b32 v{T0}, 63, v0
    v_lshlrev_b32 v{T0}, 4, v{T0}
    ''')
    for k in range(15):
        a(f'ds_read_b128 v[{FC+4*k}:{FC+4*k+3}], v{T0} offset:{LDS_C+1024*k}')
    a(f'''
    v_and_b32 v{T0}, 15, v0
    v_cvt_f32_u32 v{T0+1}, v{T0}
    v_cvt_f32_u32 v{T0+2}, v2
    v_mul_f32 v{T0+1}, {f32(1/16)}, v{T0+1}
    v_add_f32 v{T0+2}, v{T0+2}, v{T0+2}
    v_mul_f32 v{T0+2}, v{T0+2}, v{T0+1}
    v_add_f32 v{T0+1}, v{T0+1}, v{T0+2}
    v_cos_f32 v{T0+3}, v{T0+2}
    v_sin_f32 v{T0+4}, v{T0+2}
    v_cos_f32 v{T0+5}, v{T0+1}
    v_sin_f32 v{T0+6}, v{T0+1}
    s_and_b32 s25, s20, 3
    s_mul_i32 s24, s25, {VS}
    s_add_u32 s24, s24, {LDS_V+4*VOFF}
    v_min_u32 v1, 1, v1
    v_lshl_add_u32 v7, v7, 1, v1
    v_mul_u32_u24 v3, 320, v2
    v_add_u32 v3, s24, v3
    v_lshl_add_u32 v7, v7, 2, v3
    v_lshl_add_u32 v3, v{T0}, 2, v3
    v_lshlrev_b32 v1, 3, v2
    v_lshl_add_u32 v1, v{T0}, 5, v1
    v_lshlrev_b32 v2, 28, v{T0}
    v_and_or_b32 v2, v2, s43, v1
    v_mov_b32 v4, s24
    v_cvt_pk_bf16_f32 v{BM}, v{T0+3}, v{T0+4}
    v_cvt_pk_bf16_f32 v{BM+1}, v{T0+5}, v{T0+6}
    v_cvt_pk_bf16_f32 v{BM+2}, -v{T0+4}, v{T0+3}
    v_cvt_pk_bf16_f32 v{BM+3}, -v{T0+6}, v{T0+5}
    s_lshl_b32 s21, s25, 7
    s_add_u32 s21, s21, s42
    s_sub_u32 s22, 2048, s21
    s_mul_i32 s22, s22, 1280
    s_lshr_b32 s27, s21, 6
    s_and_b32 s23, s21, 1023
    s_cselect_b32 s22, s22, 0
    s_cselect_b32 s23, 0, s43
    s_cselect_b32 s26, -1, 0xffff
    s_cselect_b32 s27, 0, s27
    s_mul_i32 s21, s21, 1280
    s_mul_i32 s25, s27, 0x202000
    s_mov_b32 s50, 0
    s_mov_b32 s51, s43
    v_sub_u32 v109, 248, v1
    v_and_b32 v109, 0x80000fff, v109
    ''')
    if X4:
        a('v_and_b32 v108, 8, v1\n v_mad_u32_u24 v1, v108, 63, v1\n v_sub_u32 v108, 1264, v1')
    else:
        a('v_sub_u32 v108, 760, v1')
    a(f'''
    v_or_b32 v108, s23, v108
    v_or_b32 v109, s23, v109
    v_and_b32 v110, 63, v0
    v_add_u32 v110, 16, v110
    v_lshrrev_b32 v111, 6, v110
    v_and_b32 v110, 63, v110
    v_add_lshl_u32 v110, v110, v111, 2
    v_cndmask_b32 v110, v110, 0, s[50:51]
    s_cmp_lt_u32 s20, 4
    s_mov_b32 s10, {NB}
    s_mov_b32 s11, 0x20000
    s_mov_b32 s44, 0.5
    s_mov_b32 s45, -0.5
    ''')
    for k in range(4):
        a(f'v_and_b32 v{BM+k}, s26, v{BM+k}')
    for k in range(4):
        a(f'v_lshlrev_b32 v{BM+k}, s27, v{BM+k}')
    a('s_mov_b64 s[46:47], -1')
    a('s_cbranch_scc0 L_wait')
    a('s_branch L_b3')
    a('L_retry:')
    if MASK:
        a('s_wqm_b64 s[46:47], s[48:49]')
    a('s_mov_b64 exec, s[46:47]')
    if BOUND:
        a(f'''s_add_u32 s33, s33, 1
        s_cmp_ge_u32 s33, {BOUND}
        s_cbranch_scc1 L_go''')
    if RSLEEP: a(f's_sleep {RSLEEP}')
    if DIAG: a(f's_add_u32 s{diag.SB+12}, s{diag.SB+12}, 1')
    uloads(0); uloads(1)
    a('L_wait:')
    def shuffle(G):
        a(f'''
        v_swap_b32 v{G+1}, v{G+4}
        v_swap_b32 v{G+2}, v{G+8}
        v_mov_b32 v{G+3}, v{G+12}
        v_swap_b32 v{G+6}, v{G+9}
        v_mov_b32 v{G+7}, v{G+13}
        v_mov_b32 v{G+11}, v{G+14}
        ''')
    def amfma(kh):
        for T in range(3):
            c = '0' if kh == 0 else f'v[{DA+4*T}:{DA+4*T+3}]'
            a(f'v_mfma_f32_16x16x32_bf16 v[{DA+4*T}:{DA+4*T+3}], v[{MA+4*kh}:{MA+4*kh+3}], v[{LR[kh]+4*T}:{LR[kh]+4*T+3}], {c}')
    for kh in range(2):
        for k in range(4):
            a(f's_waitcnt vmcnt({7-4*kh-k})')
            a(f'v_cmpx_eq_u32 vcc, s36, v{LR[kh]+4*k+3}')
        shuffle(LR[kh])
        if kh == 0:
            a('s_mov_b64 exec, -1')
            amfma(0)
            a('s_mov_b64 exec, vcc')
    a('s_andn2_b64 s[48:49], s[46:47], vcc')
    a('s_cbranch_scc1 L_retry')
    a('L_go:')
    a('s_mov_b64 exec, -1')
    st(a, 4)
    amfma(1)
    for T in range(3):
        for pi in range(2):
            a(f'v_cvt_pk_bf16_f32 v{G0+8+2*T+pi}, v{DA+4*T+2*pi}, v{DA+4*T+2*pi+1}')
        a(f'ds_write_b64 v6, v[{G0+8+2*T}:{G0+8+2*T+1}] offset:{LDS_V+8*T}')
    a(f'''
    L_b3:
    s_add_u32 s25, s25, 0x01000c0c
    v_mov_b32 v5, v108
    v_mov_b32 v30, v109
    v_mov_b32 v31, v110
    s_waitcnt lgkmcnt(0)
    s_barrier
    ''')
    if DIAG:
        st(a, 5); a('s_waitcnt lgkmcnt(0)')
    VO, Y, P, INI, TT, DB = 8, 8, 20, 120, 124, 96
    a(f'''
    ds_read2_b32 v[{VO}:{VO+1}], v3 offset0:0 offset1:40
    ds_read2_b32 v[{VO+2}:{VO+3}], v3 offset0:16 offset1:56
    ds_read2_b32 v[{VO+4}:{VO+5}], v7 offset0:32 offset1:72
    ds_read_b32 v{INI+2}, v4 offset:1280
    ''')
    def bm(t, part):
        return f'v_mfma_f32_16x16x16_bf16 v[{DB+8*t+4*part}:{DB+8*t+4*part+3}], v[{VO+2*t}:{VO+2*t+1}], v[{BM+2*part}:{BM+2*part+1}], 0'
    def tw(t):
        n = 4 if t < 2 else 2
        o = []
        for r in range(n): o.append(f'v_mul_f32 v{TT+r}, v{DB+8*t+r}, v{TC+4*t+r}')
        for r in range(n): o.append(f'v_fmac_f32 v{TT+r}, v{DB+8*t+4+r}, v{TS+4*t+r}')
        for r in range(n): o.append(f'v_mul_f32 v{DB+8*t+4+r}, v{DB+8*t+4+r}, v{TC+4*t+r}')
        for r in range(n): o.append(f'v_fma_f32 v{DB+8*t+4+r}, -v{DB+8*t+r}, v{TS+4*t+r}, v{DB+8*t+4+r}')
        for r in range(n): o.append(f'v_cvt_pk_bf16_f32 v{P+4*t+r}, v{TT+r}, v{DB+8*t+4+r}')
        return o
    def cm(t, b):
        n = 4 if t < 2 else 2
        c = f'v[{INI}:{INI+3}]' if t == 0 else f'v[{Y+4*b}:{Y+4*b+3}]'
        mn = 'v_mfma_f32_16x16x32_bf16' if t < 2 else 'v_mfma_f32_16x16x16_bf16'
        return f'{mn} v[{Y+4*b}:{Y+4*b+3}], v[{P+4*t}:{P+4*t+n-1}], v[{FC+12*b+4*t}:{FC+12*b+4*t+n-1}], {c}'
    ini = [f'v_perm_b32 v{INI+2}, v{INI+2}, v{INI+2}, s25',
           f'v_pk_mul_f32 v[{INI}:{INI+1}], v[{INI+2}:{INI+3}], s[44:45] op_sel_hi:[0,1]',
           f'v_pk_mul_f32 v[{INI+2}:{INI+3}], v[{INI+2}:{INI+3}], s[44:45] op_sel_hi:[0,1]']
    for t in range(3):
        a(f's_waitcnt lgkmcnt({3-t})')
        a(bm(t, 0)); a(bm(t, 1))
    a('s_waitcnt lgkmcnt(0)')
    for l in ini: a(l)
    if 'tail' in OPT: st(a, 1)
    if not ILV:
        for t in range(3):
            for l in tw(t): a(l)
            for b in range(3): a(cm(t, b))
    else:
        for l in tw(0): a(l)
        for t in (1, 2):
            w = tw(t)
            k = 0
            for b in range(3):
                a(w[k]); a(w[k+1]); k += 2
                a(cm(t - 1, b))
            for l in w[k:]: a(l)
        for b in range(3): a(cm(2, b))
    if 'tail' in OPT: st(a, 2)
    O = 96; R = 104; Mi = 108
    SCY = OPT.get('scy', 'sc1').replace('+', ' ')
    for b in range(3):
        a(f'ds_bpermute_b32 v{R+b}, v31, v{Y+4*b}')
    MI = [Mi + 2, Mi, Mi + 4] if X4 else [Mi, Mi + 2, Mi + 4]
    def dcv(b):
        a(f'v_cvt_pk_bf16_f32 v{O+2*b}, v{Y+4*b}, v{Y+4*b+1}')
        a(f'v_cvt_pk_bf16_f32 v{O+2*b+1}, v{Y+4*b+2}, v{Y+4*b+3}')
    def m1(b): a(f'v_cvt_pk_bf16_f32 v{MI[b]+1}, v{Y+4*b+2}, v{Y+4*b+1}')
    def m0(b): a(f'v_cvt_pk_bf16_f32 v{MI[b]}, v{R+b}, v{Y+4*b+3}')
    if X4:
        dcv(0); dcv(1); dcv(2)
        a(f'v_permlane16_swap_b32 v{O}, v{O+2}')
        a(f'v_permlane16_swap_b32 v{O+1}, v{O+3}')
        a(f'buffer_store_dwordx4 v[{O}:{O+3}], v1, s[8:11], s21 offen {SCY}')
        a(f'buffer_store_dwordx2 v[{O+4}:{O+5}], v2, s[8:11], s21 offen offset:1024 {SCY}')
        m1(0); m1(1); m1(2)
        a('s_waitcnt lgkmcnt(0)')
        a(f'v_cndmask_b32 v{R}, v{R}, v{R+1}, s[50:51]')
        a(f'v_cndmask_b32 v{R+1}, v{R+1}, v{R+2}, s[50:51]')
        a(f'v_permlane16_swap_b32 v{MI[0]+1}, v{MI[1]+1}')
        m0(0); m0(1); m0(2)
        a(f'buffer_store_dwordx2 v[{MI[2]}:{MI[2]+1}], v30, s[8:11], s22 offen {SCY}')
        a(f'v_permlane16_swap_b32 v{MI[0]}, v{MI[1]}')
        a(f'buffer_store_dwordx4 v[{Mi}:{Mi+3}], v5, s[8:11], s22 offen {SCY}')
    else:
        for b in range(3):
            dcv(b)
            a(f'buffer_store_dwordx2 v[{O+2*b}:{O+2*b+1}], v{1 if b < 2 else 2}, s[8:11], s21 offen offset:{512*b} {SCY}')
        m1(0); m1(1); m1(2)
        a('s_waitcnt lgkmcnt(0)')
        a(f'v_cndmask_b32 v{R}, v{R}, v{R+1}, s[50:51]')
        a(f'v_cndmask_b32 v{R+1}, v{R+1}, v{R+2}, s[50:51]')
        m0(0)
        a(f'buffer_store_dwordx2 v[{Mi}:{Mi+1}], v5, s[8:11], s22 offen offset:512 {SCY}')
        m0(1)
        a(f'buffer_store_dwordx2 v[{Mi+2}:{Mi+3}], v5, s[8:11], s22 offen {SCY}')
        m0(2)
        a(f'buffer_store_dwordx2 v[{Mi+4}:{Mi+5}], v30, s[8:11], s22 offen {SCY}')
    if 'tail' in OPT: st(a, 6)
    a('s_cmp_eq_u32 s20, 0')
    a('s_cbranch_scc1 L_eupd')
    a('L_fin:')
    if DIAG: diag.stamp_store(a, 0, 16, vb=100)
    a('L_end:')
    a('s_endpgm')
    a(f'''
    L_eupd:
    s_mov_b64 exec, 1
    s_mov_b32 s21, {EO}
    v_mov_b32 v30, s36
    buffer_store_dword v30, off, s[16:19], s21
    s_mov_b64 exec, -1
    s_branch L_fin
    ''')
    a('L_codeend:')
    return 128

def main(out):
    a = Asm(); nv = kernel(a); a.pad(True)
    s = f'''; FNet spectral mixing via MFMA FFT (single launch, folded input, tagged in-kernel hand-off)
; @launch grid=(256,1,1) block=(512,1,1) lds={LDS_TOTAL}
.amdgcn_target "amdgcn-amd-amdhsa--gfx950"
.text
.globl {KN}
.p2align 8
.type {KN},@function
''' + a.text()
    s += f'''.section .rodata,"a"
.p2align 6
.amdhsa_kernel {KN}
  .amdhsa_next_free_vgpr {nv}
  .amdhsa_next_free_sgpr {96 if DIAG else 56}
  .amdhsa_accum_offset {nv}
  .amdhsa_group_segment_fixed_size 0
  .amdhsa_kernarg_size 64
  .amdhsa_user_sgpr_count 2
  .amdhsa_user_sgpr_kernarg_segment_ptr 1
  .amdhsa_system_sgpr_workgroup_id_x 1
  .amdhsa_float_denorm_mode_32 3
.end_amdhsa_kernel
'''
    open(out, 'w').write(s)

main(sys.argv[1])
```

```python
import sys, struct, math
sys.path.insert(0, 'gen')
from asmlib import Asm
import diag
OPT = dict(a.split('=') for a in sys.argv[2:])
DIAG = 'st' in OPT
RSLEEP = int(OPT.get('rsleep', 0))
BOUND = int(OPT.get('bound', 0))
GATE = OPT.get('gate', 'ack')
MASK = int(OPT.get('mask', 1))
PERM = int(OPT.get('perm', 1))
ILV = int(OPT.get('ilv', 1))
X4 = int(OPT.get('x4', 1))
ALIGNG = int(OPT.get('aligng', 1))
def st(a, k):
    if DIAG: diag.stamp(a, k)
def f32(x):
    return '0x%08x' % struct.unpack('<I', struct.pack('<f', x))[0]

NB = 2621440
TS_ = 16384 + int(OPT.get('padl', 0))
EO = 128 * TS_
UB = EO + 128
TAGC = 0x9E3779B9
KN = 'standalone__spectral_fnet__prompt_kernel'
VS = 1408
VOFF = 23 if ALIGNG else 1
LDS_V = 8192
LDS_C = 14336
LDS_TOTAL = LDS_C + 15 * 1024
G0, MA, G1, DA = 8, 24, 112, 96
FC, TC, TS, BM = 32, 68, 80, 92

def kernel(a):
    a(f'{KN}:')
    if DIAG: diag.init(a)
    st(a, 0)
    X, M1, D = 8, 96, 112
    TA, TB = 20, 21
    a(f'''
    s_load_dwordx2 s[4:5], s[0:1], 0
    s_load_dwordx2 s[16:17], s[0:1], 56
    s_load_dwordx2 s[8:9], s[0:1], 40
    s_getpc_b64 s[24:25]
    L_pf:
    v_xor_b32 v1, 448, v0
    v_lshlrev_b32 v1, 6, v1
    s_mov_b32 s26, L_codeend-L_pf
    s_mov_b32 s27, 0x20000
    buffer_load_dword v15, v1, s[24:27], 0 offen
    v_lshrrev_b32 v3, 6, v0
    v_bfe_u32 v2, v0, 4, 2
    v_and_b32 v1, 3, v0
    v_bfe_u32 v7, v0, 2, 2
    s_and_b32 s12, s2, 15
    s_lshr_b32 s13, s2, 4
    s_mul_i32 s14, s13, 10
    ''')
    if ALIGNG:
        a('''
        s_mul_i32 s15, s13, 43
        s_add_u32 s15, s15, 86
        s_lshr_b32 s15, s15, 7
        s_lshl1_add_u32 s14, s15, s14
        s_sub_u32 s14, s14, 11
        ''')
        if ALIGNG == 2: a('s_max_i32 s14, s14, 0')
    ROT = int(OPT.get('rot', 4))
    if ROT:
        a(f's_mul_i32 s15, s13, {ROT}\n v_add_u32 v23, s15, v3\n v_and_b32 v23, 7, v23\n v_lshl_add_u32 v{TB}, v2, 5, v23')
    else:
        a(f'v_lshl_add_u32 v{TB}, v2, 5, v3')
    a(f'''
    v_lshl_add_u32 v4, v{TB}, 4, s12
    v_mul_u32_u24 v4, 1280, v4
    v_min_u32 v5, 2, v1
    v_mad_u32_u24 v5, v7, 3, v5
    v_add_lshl_u32 v5, v5, s14, 2
    v_readfirstlane_b32 s20, v3
    v_cmp_eq_u32 vcc, 0, v5
    v_add_u32 v6, -2, v5
    v_mov_b32 v17, 1280
    s_brev_b32 s43, 1
    v_and_b32 v6, 0x80000fff, v6
    v_add_u32 v16, v4, v6
    v_cndmask_b32 v6, v5, v17, vcc
    v_add_u32 v4, v4, v6
    v_sub_u32 v17, {1665*1280}, v4
    v_add_u32 v18, {491520}, v17
    v_subrev_u32 v19, {NB}, v18
    v_min_u32 v18, v18, v19
    v_and_or_b32 v17, v5, s43, v17
    v_and_or_b32 v18, v5, s43, v18
    s_mov_b32 s6, {NB}
    s_mov_b32 s7, 0x20000
    s_mov_b32 s29, 163840
    s_mov_b32 s30, {2*163840}
    s_mov_b32 s31, {3*163840}
    s_mov_b32 s18, {UB}
    s_mov_b32 s19, 0x20000
    v_and_b32 v22, 15, v0
    ''')
    if PERM:
        a(f'v_and_b32 v{TA}, 1, v0\n v_lshlrev_b32 v{TA}, 3, v{TA}\n v_bfe_u32 v23, v0, 1, 3\n v_add_u32 v{TA}, v{TA}, v23\n v_cvt_f32_u32 v{TA}, v{TA}')
    else:
        a(f'v_cvt_f32_u32 v{TA}, v22')
    a(f'''
    v_cvt_f32_u32 v{TB}, v{TB}
    v_mul_f32 v{TA}, {f32(1/128)}, v{TA}
    v_mul_f32 v{TB}, v{TB}, v{TA}
    v_mul_f32 v{TA}, {f32(8.0)}, v{TA}
    s_cmp_ge_u32 s2, 256
    s_cbranch_scc1 L_end
    s_mov_b32 s21, {EO}
    ''')
    XPF = OPT.get('xpf', '')
    if XPF == 'lin':
        a(f'''v_lshlrev_b32 v23, 7, v0
        v_cmp_gt_u32 vcc, 80, v0
        s_mul_i32 s15, s2, 10240
        v_mov_b32 v19, s43\n v_cndmask_b32 v23, v19, v23, vcc
        s_waitcnt lgkmcnt(0)
        buffer_load_dword v14, v23, s[4:7], s15 offen''')
    elif XPF == 'lin8':
        a(f'''v_and_b32 v23, 63, v0
        v_cmp_gt_u32 vcc, 10, v23
        v_lshlrev_b32 v23, 7, v23
        s_lshl3_add_u32 s15, s2, s20
        s_mul_i32 s15, s15, 1280
        v_mov_b32 v19, s43\n v_cndmask_b32 v23, v19, v23, vcc
        s_waitcnt lgkmcnt(0)
        buffer_load_dword v14, v23, s[4:7], s15 offen''')
    a(f'''
    s_waitcnt lgkmcnt(0)
    buffer_load_dword v{X}, v16, s[4:7], 0 offen
    buffer_load_dword v{X+1}, v16, s[4:7], s29 offen
    buffer_load_dword v{X+2}, v16, s[4:7], s30 offen
    buffer_load_dword v{X+3}, v16, s[4:7], s31 offen
    buffer_load_dword v{X+4}, v18, s[4:7], 0 offen
    buffer_load_dword v{X+5}, v17, s[4:7], s30 offen
    buffer_load_dword v{X+6}, v17, s[4:7], s29 offen
    buffer_load_dword v{X+7}, v17, s[4:7], 0 offen
    ''')
    CAN = int(OPT.get('can', 0))
    if CAN:
        a(f'''v_and_b32 v23, 63, v0
        v_cmp_gt_u32 vcc, {CAN}, v23
        v_lshlrev_b32 v23, 7, v23
        s_lshl3_add_u32 s15, s2, s20
        s_mul_i32 s15, s15, 1280
        v_mov_b32 v19, s43
        v_cndmask_b32 v23, v19, v23, vcc
        buffer_load_dword v120, v23, s[4:7], s15 offen''')
    a(f'''
    s_buffer_load_dword s36, s[16:19], s21
    s_mov_b32 s33, 0
    ''')
    for r in range(4):
        a(f'v_cos_f32 v{D+2*r}, v{TB}')
        a(f'v_sin_f32 v{D+1+2*r}, v{TB}')
        if r < 3: a(f'v_add_f32 v{TB}, v{TB}, v{TA}')
    a(f'''
    v_and_b32 v4, 1, v7
    v_lshlrev_b32 v4, 1, v4
    v_xor_b32 v4, v4, v2
    v_lshl_add_u32 v4, v1, 2, v4
    v_lshl_add_u32 v4, v7, 8, v4
    s_mul_i32 s23, s13, {ROT}
    s_add_u32 s23, s23, s20
    s_bfe_u32 s21, s23, 0x20001
    s_lshl_b32 s21, s21, 7
    s_and_b32 s22, s23, 1
    s_lshl2_add_u32 s21, s22, s21
    v_lshl_add_u32 v4, v4, 3, s21
    ''')
    dec = f'''s_lshr_b32 s34, s2, 5
        s_lshl_b32 s34, s34, 3
        s_and_b32 s35, s2, 7
        s_or_b32 s34, s34, s35
        s_bfe_u32 s42, s2, 0x20003
        s_lshl_b32 s42, s42, 9
        s_and_b32 s35, s2, 0xf7
        s_cmp_eq_u32 s35, 16
        s_cselect_b32 s34, 64, s34
        s_cselect_b32 s35, 1024, 0
        s_sub_u32 s42, s42, s35
        s_add_u32 s42, s42, s34'''.split('\n')
    for r in range(4):
        c, s_ = D + 2 * r, D + 1 + 2 * r
        a(f'v_cvt_pk_bf16_f32 v{M1+r}, v{c}, v{s_}')
        a(dec[3*r])
        a(f'v_cvt_pk_bf16_f32 v{M1+4+r}, -v{s_}, v{c}')
        a(dec[3*r+1])
        a(f'v_cvt_pk_bf16_f32 v{M1+8+r}, v{s_}, v{c}')
        a(dec[3*r+2])
        a(f'v_cvt_pk_bf16_f32 v{M1+12+r}, v{c}, -v{s_}')
    a('''
    s_cmp_ge_u32 s20, 4
    s_cbranch_scc1 L_upper
    ''')
    F2, Q = 16, 24
    a(f'''
    v_bfe_u32 v{TA}, v0, 1, 3
    v_cvt_f32_u32 v{TA}, v{TA}
    v_and_b32 v{TB}, 1, v0
    v_cvt_f32_u32 v{TB}, v{TB}
    v_cvt_f32_u32 v22, v2
    v_mul_f32 v{TA}, {f32(0.125)}, v{TA}
    v_mul_f32 v{TB}, {f32(0.25)}, v{TB}
    v_add_f32 v22, v22, v22
    v_fma_f32 v{TB}, v22, v{TA}, v{TB}
    v_add_f32 v{TA}, v{TA}, v{TB}
    v_cos_f32 v22, v{TB}
    v_sin_f32 v23, v{TB}
    v_cos_f32 v18, v{TA}
    v_sin_f32 v19, v{TA}
    v_and_b32 v5, 63, v0
    s_and_b32 s22, s20, 1
    s_lshl_b32 s22, s22, 1
    v_xor_b32 v5, s22, v5
    s_lshl_b32 s21, s20, 11
    v_lshl_add_u32 v5, v5, 3, s21
    v_lshl_add_u32 v6, v2, 3, v3
    v_lshl_add_u32 v6, v6, 2, v7
    v_mul_u32_u24 v6, {TS_}, v6
    v_lshl_add_u32 v6, v1, 4, v6
    v_cvt_pk_bf16_f32 v{F2}, v22, v23
    v_cvt_pk_bf16_f32 v{F2+1}, v18, v19
    s_lshl_b32 s28, s12, 10
    s_lshl_b32 s29, s13, 6
    s_add_u32 s28, s28, s29
    s_add_u32 s29, s28, {16*TS_}
    s_branch L_stage1
    ''')
    C0 = 32; CC = 40; CS = 52
    a(f'''
    L_upper:
    s_and_b32 s21, s20, 3
    s_lshl_b32 s22, s21, 4
    s_cmp_eq_u32 s21, 3
    s_cselect_b32 s22, 0, s22
    s_mov_b32 s23, {f32(1/40)}
    s_cselect_b32 s23, {f32(1/640)}, s23
    v_add_u32 v{C0}, s22, v22
    v_cvt_f32_u32 v{C0}, v{C0}
    v_cvt_f32_u32 v{C0+1}, v2
    v_mul_f32 v{C0}, s23, v{C0}
    v_add_f32 v{C0+1}, v{C0+1}, v{C0+1}
    v_mul_f32 v{C0+1}, v{C0+1}, v{C0}
    v_add_f32 v{C0+2}, v{C0+1}, v{C0+1}
    v_fmamk_f32 v{C0+1}, v{C0}, {f32(32.0)}, v{C0+1}
    v_fmamk_f32 v{C0+3}, v{C0}, {f32(16.0)}, v{C0+2}
    v_and_b32 v{C0+4}, 63, v0
    s_mul_i32 s22, s21, 3072
    v_lshl_add_u32 v{C0+4}, v{C0+4}, 4, s22
    ''')
    for i in range(4):
        for base, off in ((C0 + 2, 0), (C0 + 3, 4), (C0 + 1, 8)):
            if off == 8 and i >= 2: continue
            a(f'v_cos_f32 v{CC+off+i}, v{base}')
            a(f'v_sin_f32 v{CS+off+i}, v{base}')
            if i < (1 if off == 8 else 3): a(f'v_add_f32 v{base}, v{base}, v{C0}')
    a('s_cbranch_scc1 L_craw')
    for j in range(10):
        a(f'v_cvt_pk_bf16_f32 v{CC+j}, v{CC+j}, v{CS+j}')
    a('s_branch L_cw')
    a('L_craw:')
    for k in range(3):
        a(f'ds_write_b128 v{C0+4}, v[{CS+4*k}:{CS+4*k+3}] offset:{LDS_C+3072+1024*k}')
    a('L_cw:')
    for k in range(3):
        a(f'ds_write_b128 v{C0+4}, v[{CC+4*k}:{CC+4*k+3}] offset:{LDS_C+1024*k}')
    a(f'''
    L_stage1:
    s_waitcnt vmcnt({5 if CAN else 4})
    v_mfma_f32_16x16x32_bf16 v[{D}:{D+3}], v[{X}:{X+3}], v[{M1}:{M1+3}], 0
    v_mfma_f32_16x16x32_bf16 v[{D+4}:{D+7}], v[{X}:{X+3}], v[{M1+4}:{M1+7}], 0
    s_waitcnt vmcnt({1 if CAN else 0})
    ''')
    st(a, 1)
    a(f'''
    v_mfma_f32_16x16x32_bf16 v[{D}:{D+3}], v[{X+4}:{X+7}], v[{M1+8}:{M1+11}], v[{D}:{D+3}]
    v_mfma_f32_16x16x32_bf16 v[{D+4}:{D+7}], v[{X+4}:{X+7}], v[{M1+12}:{M1+15}], v[{D+4}:{D+7}]
    s_cmp_ge_u32 s20, 4
    ''')
    for i in range(3):
        a(f'v_cvt_pk_bf16_f32 v{X+i}, v{D+i}, v{D+4+i}')
        a(f'ds_write_b32 v4, v{X+i} offset:{512*i}')
    a(f'''
    s_waitcnt lgkmcnt(0)
    s_barrier
    s_cbranch_scc1 L_cons
    ''')
    for T in range(3):
        a(f'ds_read_b64 v[{X+2*T}:{X+2*T+1}], v5 offset:{512*T}')
    a(f's_add_u32 s36, s36, {TAGC}')
    a(f'v_mov_b32 v{Q+3}, s36')
    a(f'v_mov_b32 v{Q+7}, s36')
    for T in range(3):
        a(f's_waitcnt lgkmcnt({2-T})')
        a(f'v_mfma_f32_16x16x16_bf16 v[{M1+4*T}:{M1+4*T+3}], v[{F2}:{F2+1}], v[{X+2*T}:{X+2*T+1}], 0')
    for T in range(2):
        for e in range(2):
            a(f'v_cvt_pk_bf16_f32 v{Q+4*e+T}, v{M1+4*T+2*e}, v{M1+4*T+2*e+1}')
    for e in range(2):
        a(f'v_cvt_pk_bf16_f32 v{Q+4*e+2}, v{M1+8+2*e}, v{M1+8+2*e+1}')
        a(f'buffer_store_dwordx4 v[{Q+4*e}:{Q+4*e+3}], v6, s[16:19], s{28+e} offen sc1')
    st(a, 2)
    if GATE == 'ack': a('s_waitcnt vmcnt(0)')
    a('''
    s_barrier
    s_or_b32 s22, s20, s2
    s_cbranch_scc1 L_fin
    s_mov_b32 s42, 1024
    s_branch L_rdc
    ''')
    T0 = 68
    a(f'''
    L_cons:
    s_waitcnt vmcnt(0)
    ''')
    st(a, 2)
    a(f'''
    s_add_u32 s36, s36, {TAGC}
    s_sub_u32 s35, 128, s34
    s_and_b32 s35, s35, 127
    ''')
    if PERM:
        for d, t in ((38, 34), (40, 35)):
            a(f's_and_b32 s{d}, s{t}, 0x70\n s_and_b32 s21, s{t}, 7\n s_lshl1_add_u32 s{d}, s21, s{d}\n s_bfe_u32 s21, s{t}, 0x10003\n s_add_u32 s{d}, s{d}, s21\n s_mul_i32 s{d}, s{d}, {TS_}')
    else:
        a(f's_mul_i32 s38, s34, {TS_}\n s_mul_i32 s40, s35, {TS_}')
    a(f'''
    s_add_u32 s39, s38, 8192
    s_add_u32 s41, s40, 8192
    ''')
    if int(OPT.get('urot', 1)):
        a(f's_lshr_b32 s21, s2, 3\n v_add_u32 v{T0}, s21, v3\n v_and_b32 v{T0}, 3, v{T0}')
    else:
        a(f'v_and_b32 v{T0}, 3, v3')
    a(f'''
    v_lshlrev_b32 v5, 11, v2
    v_lshl_add_u32 v5, v{T0}, 8, v5
    v_lshl_add_u32 v5, v22, 4, v5
    v_lshl_add_u32 v{T0}, v{T0}, 2, v7
    v_mul_u32_u24 v6, {VS}, v2
    v_mad_u32_u24 v6, v1, 24, v6
    ''')
    if ALIGNG:
        a(f'''
        v_mul_u32_u24 v{T0+1}, 43, v{T0}
        v_add_u32 v{T0+1}, 86, v{T0+1}
        v_lshrrev_b32 v{T0+1}, 7, v{T0+1}
        v_lshl_add_u32 v6, v{T0+1}, 4, v6
        ''')
    a(f'''
    v_mul_u32_u24 v{T0}, 80, v{T0}
    ''')
    if ALIGNG == 2:
        a(f'v_cmp_eq_u32 vcc, 0, v{T0}\n v_mov_b32 v{T0+1}, 88\n v_cndmask_b32 v{T0}, v{T0}, v{T0+1}, vcc')
    a(f'''
    v_add_u32 v6, v6, v{T0}
    v_and_b32 v{T0+1}, 1, v0
    s_cmp_eq_u32 s2, 0
    s_cselect_b32 s31, 1, 99
    v_and_b32 v{T0+2}, 13, v0
    v_cmp_eq_u32 vcc, s31, v{T0+2}
    v_cvt_f32_u32 v{T0+3}, v2
    v_bfe_u32 v{T0+2}, v0, 1, 1
    v_cndmask_b32 v{T0}, v7, 8, vcc
    v_cndmask_b32 v{T0+1}, v{T0+1}, 0, vcc
    v_lshl_add_u32 v{T0}, v{T0}, 7, s42
    v_cvt_f32_u32 v{T0}, v{T0}
    v_mul_f32 v{T0}, {f32(1/2048)}, v{T0}
    v_add_f32 v{T0+3}, v{T0+3}, v{T0+3}
    v_add_u32 v{T0+1}, v{T0+1}, v{T0+2}
    v_cvt_f32_u32 v{T0+1}, v{T0+1}
    v_mul_f32 v{T0+1}, {f32(0.25)}, v{T0+1}
    v_fma_f32 v{T0+1}, v{T0}, v{T0+3}, v{T0+1}
    v_add_f32 v{T0+3}, v{T0+1}, v{T0}
    v_cos_f32 v{T0+4}, v{T0+1}
    v_sin_f32 v{T0+5}, v{T0+1}
    v_cos_f32 v{T0+6}, v{T0+3}
    v_sin_f32 v{T0+7}, v{T0+3}
    v_fmamk_f32 v{T0+1}, v{T0}, {f32(8.0)}, v{T0+1}
    v_fmamk_f32 v{T0+3}, v{T0}, {f32(8.0)}, v{T0+3}
    v_cos_f32 v{T0+8}, v{T0+1}
    v_sin_f32 v{T0+9}, v{T0+1}
    v_cos_f32 v{T0+10}, v{T0+3}
    v_sin_f32 v{T0+11}, v{T0+3}
    v_lshlrev_b32 v{T0+2}, 4, v{T0+2}
    v_lshrrev_b32 v{T0+2}, v{T0+2}, s43
    ''')
    for k in range(4):
        a(f'v_pk_mul_f32 v[{T0+4+2*k}:{T0+5+2*k}], v[{T0+4+2*k}:{T0+5+2*k}], 0.5 op_sel_hi:[1,0]')
    for k in range(4):
        a(f'v_cvt_pk_bf16_f32 v{MA+2*k}, v{T0+4+2*k}, v{T0+5+2*k}')
    for k in range(4):
        a(f'v_xor_b32 v{MA+2*k+1}, v{MA+2*k}, v{T0+2}')
    if 'delay' in OPT:
        a(f'''L_dly:
        s_memrealtime s[44:45]
        s_waitcnt lgkmcnt(0)
        s_sub_u32 s44, s44, s{diag.SB}
        s_cmp_lt_u32 s44, {OPT['delay']}
        s_cbranch_scc1 L_dly''')
    a('s_barrier')
    st(a, 3)
    LR = [G0, G1]
    def uloads(kh):
        for k in range(4):
            a(f'buffer_load_dwordx4 v[{LR[kh]+4*k}:{LR[kh]+4*k+3}], v5, s[16:19], s{(38 if k % 2 == 0 else 40)+kh} offen offset:{1024*(k>>1)} sc1')
    uloads(0); uloads(1)
    T0 = DA
    a(f'''
    L_rdc:
    v_and_b32 v{T0}, 63, v0
    v_lshlrev_b32 v{T0}, 4, v{T0}
    ''')
    for k in range(15):
        a(f'ds_read_b128 v[{FC+4*k}:{FC+4*k+3}], v{T0} offset:{LDS_C+1024*k}')
    a(f'''
    v_and_b32 v{T0}, 15, v0
    v_cvt_f32_u32 v{T0+1}, v{T0}
    v_cvt_f32_u32 v{T0+2}, v2
    v_mul_f32 v{T0+1}, {f32(1/16)}, v{T0+1}
    v_add_f32 v{T0+2}, v{T0+2}, v{T0+2}
    v_mul_f32 v{T0+2}, v{T0+2}, v{T0+1}
    v_add_f32 v{T0+1}, v{T0+1}, v{T0+2}
    v_cos_f32 v{T0+3}, v{T0+2}
    v_sin_f32 v{T0+4}, v{T0+2}
    v_cos_f32 v{T0+5}, v{T0+1}
    v_sin_f32 v{T0+6}, v{T0+1}
    s_and_b32 s25, s20, 3
    s_mul_i32 s24, s25, {VS}
    s_add_u32 s24, s24, {LDS_V+4*VOFF}
    v_min_u32 v1, 1, v1
    v_lshl_add_u32 v7, v7, 1, v1
    v_mul_u32_u24 v3, 320, v2
    v_add_u32 v3, s24, v3
    v_lshl_add_u32 v7, v7, 2, v3
    v_lshl_add_u32 v3, v{T0}, 2, v3
    v_lshlrev_b32 v1, 3, v2
    v_lshl_add_u32 v1, v{T0}, 5, v1
    v_lshlrev_b32 v2, 28, v{T0}
    v_and_or_b32 v2, v2, s43, v1
    v_mov_b32 v4, s24
    v_cvt_pk_bf16_f32 v{BM}, v{T0+3}, v{T0+4}
    v_cvt_pk_bf16_f32 v{BM+1}, v{T0+5}, v{T0+6}
    v_cvt_pk_bf16_f32 v{BM+2}, -v{T0+4}, v{T0+3}
    v_cvt_pk_bf16_f32 v{BM+3}, -v{T0+6}, v{T0+5}
    s_lshl_b32 s21, s25, 7
    s_add_u32 s21, s21, s42
    s_sub_u32 s22, 2048, s21
    s_mul_i32 s22, s22, 1280
    s_lshr_b32 s27, s21, 6
    s_and_b32 s23, s21, 1023
    s_cselect_b32 s22, s22, 0
    s_cselect_b32 s23, 0, s43
    s_cselect_b32 s26, -1, 0xffff
    s_cselect_b32 s27, 0, s27
    s_mul_i32 s21, s21, 1280
    s_mul_i32 s25, s27, 0x202000
    s_mov_b32 s50, 0
    s_mov_b32 s51, s43
    v_sub_u32 v109, 248, v1
    v_and_b32 v109, 0x80000fff, v109
    ''')
    if X4:
        a('v_and_b32 v108, 8, v1\n v_mad_u32_u24 v1, v108, 63, v1\n v_sub_u32 v108, 1264, v1')
    else:
        a('v_sub_u32 v108, 760, v1')
    a(f'''
    v_or_b32 v108, s23, v108
    v_or_b32 v109, s23, v109
    v_and_b32 v110, 63, v0
    v_add_u32 v110, 16, v110
    v_lshrrev_b32 v111, 6, v110
    v_and_b32 v110, 63, v110
    v_add_lshl_u32 v110, v110, v111, 2
    v_cndmask_b32 v110, v110, 0, s[50:51]
    s_cmp_lt_u32 s20, 4
    s_mov_b32 s10, {NB}
    s_mov_b32 s11, 0x20000
    s_mov_b32 s44, 0.5
    s_mov_b32 s45, -0.5
    ''')
    for k in range(4):
        a(f'v_and_b32 v{BM+k}, s26, v{BM+k}')
    for k in range(4):
        a(f'v_lshlrev_b32 v{BM+k}, s27, v{BM+k}')
    a('s_mov_b64 s[46:47], -1')
    a('s_cbranch_scc0 L_wait')
    a('s_branch L_b3')
    a('L_retry:')
    if MASK:
        a('s_wqm_b64 s[46:47], s[48:49]')
    a('s_mov_b64 exec, s[46:47]')
    if BOUND:
        a(f'''s_add_u32 s33, s33, 1
        s_cmp_ge_u32 s33, {BOUND}
        s_cbranch_scc1 L_go''')
    if RSLEEP: a(f's_sleep {RSLEEP}')
    if DIAG: a(f's_add_u32 s{diag.SB+12}, s{diag.SB+12}, 1')
    uloads(0); uloads(1)
    a('L_wait:')
    def shuffle(G):
        a(f'''
        v_swap_b32 v{G+1}, v{G+4}
        v_swap_b32 v{G+2}, v{G+8}
        v_mov_b32 v{G+3}, v{G+12}
        v_swap_b32 v{G+6}, v{G+9}
        v_mov_b32 v{G+7}, v{G+13}
        v_mov_b32 v{G+11}, v{G+14}
        ''')
    def amfma(kh):
        for T in range(3):
            c = '0' if kh == 0 else f'v[{DA+4*T}:{DA+4*T+3}]'
            a(f'v_mfma_f32_16x16x32_bf16 v[{DA+4*T}:{DA+4*T+3}], v[{MA+4*kh}:{MA+4*kh+3}], v[{LR[kh]+4*T}:{LR[kh]+4*T+3}], {c}')
    for kh in range(2):
        for k in range(4):
            a(f's_waitcnt vmcnt({7-4*kh-k})')
            a(f'v_cmpx_eq_u32 vcc, s36, v{LR[kh]+4*k+3}')
        shuffle(LR[kh])
        if kh == 0:
            a('s_mov_b64 exec, -1')
            amfma(0)
            a('s_mov_b64 exec, vcc')
    a('s_andn2_b64 s[48:49], s[46:47], vcc')
    a('s_cbranch_scc1 L_retry')
    a('L_go:')
    a('s_mov_b64 exec, -1')
    st(a, 4)
    amfma(1)
    for T in range(3):
        for pi in range(2):
            a(f'v_cvt_pk_bf16_f32 v{G0+8+2*T+pi}, v{DA+4*T+2*pi}, v{DA+4*T+2*pi+1}')
        a(f'ds_write_b64 v6, v[{G0+8+2*T}:{G0+8+2*T+1}] offset:{LDS_V+8*T}')
    a(f'''
    L_b3:
    s_add_u32 s25, s25, 0x01000c0c
    v_mov_b32 v5, v108
    v_mov_b32 v30, v109
    v_mov_b32 v31, v110
    s_waitcnt lgkmcnt(0)
    s_barrier
    ''')
    if DIAG:
        st(a, 5); a('s_waitcnt lgkmcnt(0)')
    VO, Y, P, INI, TT, DB = 8, 8, 20, 120, 124, 96
    a(f'''
    ds_read2_b32 v[{VO}:{VO+1}], v3 offset0:0 offset1:40
    ds_read2_b32 v[{VO+2}:{VO+3}], v3 offset0:16 offset1:56
    ds_read2_b32 v[{VO+4}:{VO+5}], v7 offset0:32 offset1:72
    ds_read_b32 v{INI+2}, v4 offset:1280
    ''')
    def bm(t, part):
        return f'v_mfma_f32_16x16x16_bf16 v[{DB+8*t+4*part}:{DB+8*t+4*part+3}], v[{VO+2*t}:{VO+2*t+1}], v[{BM+2*part}:{BM+2*part+1}], 0'
    def tw(t):
        n = 4 if t < 2 else 2
        o = []
        for r in range(n): o.append(f'v_mul_f32 v{TT+r}, v{DB+8*t+r}, v{TC+4*t+r}')
        for r in range(n): o.append(f'v_fmac_f32 v{TT+r}, v{DB+8*t+4+r}, v{TS+4*t+r}')
        for r in range(n): o.append(f'v_mul_f32 v{DB+8*t+4+r}, v{DB+8*t+4+r}, v{TC+4*t+r}')
        for r in range(n): o.append(f'v_fma_f32 v{DB+8*t+4+r}, -v{DB+8*t+r}, v{TS+4*t+r}, v{DB+8*t+4+r}')
        for r in range(n): o.append(f'v_cvt_pk_bf16_f32 v{P+4*t+r}, v{TT+r}, v{DB+8*t+4+r}')
        return o
    def cm(t, b):
        n = 4 if t < 2 else 2
        c = f'v[{INI}:{INI+3}]' if t == 0 else f'v[{Y+4*b}:{Y+4*b+3}]'
        mn = 'v_mfma_f32_16x16x32_bf16' if t < 2 else 'v_mfma_f32_16x16x16_bf16'
        return f'{mn} v[{Y+4*b}:{Y+4*b+3}], v[{P+4*t}:{P+4*t+n-1}], v[{FC+12*b+4*t}:{FC+12*b+4*t+n-1}], {c}'
    ini = [f'v_perm_b32 v{INI+2}, v{INI+2}, v{INI+2}, s25',
           f'v_pk_mul_f32 v[{INI}:{INI+1}], v[{INI+2}:{INI+3}], s[44:45] op_sel_hi:[0,1]',
           f'v_pk_mul_f32 v[{INI+2}:{INI+3}], v[{INI+2}:{INI+3}], s[44:45] op_sel_hi:[0,1]']
    for t in range(3):
        a(f's_waitcnt lgkmcnt({3-t})')
        a(bm(t, 0)); a(bm(t, 1))
    a('s_waitcnt lgkmcnt(0)')
    for l in ini: a(l)
    if 'tail' in OPT: st(a, 1)
    if not ILV:
        for t in range(3):
            for l in tw(t): a(l)
            for b in range(3): a(cm(t, b))
    else:
        for l in tw(0): a(l)
        for t in (1, 2):
            w = tw(t)
            k = 0
            for b in range(3):
                a(w[k]); a(w[k+1]); k += 2
                a(cm(t - 1, b))
            for l in w[k:]: a(l)
        for b in range(3): a(cm(2, b))
    if 'tail' in OPT: st(a, 2)
    O = 96; R = 104; Mi = 108
    SCY = OPT.get('scy', 'sc1').replace('+', ' ')
    for b in range(3):
        a(f'ds_bpermute_b32 v{R+b}, v31, v{Y+4*b}')
    MI = [Mi + 2, Mi, Mi + 4] if X4 else [Mi, Mi + 2, Mi + 4]
    def dcv(b):
        a(f'v_cvt_pk_bf16_f32 v{O+2*b}, v{Y+4*b}, v{Y+4*b+1}')
        a(f'v_cvt_pk_bf16_f32 v{O+2*b+1}, v{Y+4*b+2}, v{Y+4*b+3}')
    def m1(b): a(f'v_cvt_pk_bf16_f32 v{MI[b]+1}, v{Y+4*b+2}, v{Y+4*b+1}')
    def m0(b): a(f'v_cvt_pk_bf16_f32 v{MI[b]}, v{R+b}, v{Y+4*b+3}')
    if X4:
        dcv(0); dcv(1); dcv(2)
        a(f'v_permlane16_swap_b32 v{O}, v{O+2}')
        a(f'v_permlane16_swap_b32 v{O+1}, v{O+3}')
        a(f'buffer_store_dwordx4 v[{O}:{O+3}], v1, s[8:11], s21 offen {SCY}')
        a(f'buffer_store_dwordx2 v[{O+4}:{O+5}], v2, s[8:11], s21 offen offset:1024 {SCY}')
        m1(0); m1(1); m1(2)
        a('s_waitcnt lgkmcnt(0)')
        a(f'v_cndmask_b32 v{R}, v{R}, v{R+1}, s[50:51]')
        a(f'v_cndmask_b32 v{R+1}, v{R+1}, v{R+2}, s[50:51]')
        a(f'v_permlane16_swap_b32 v{MI[0]+1}, v{MI[1]+1}')
        m0(0); m0(1); m0(2)
        a(f'buffer_store_dwordx2 v[{MI[2]}:{MI[2]+1}], v30, s[8:11], s22 offen {SCY}')
        a(f'v_permlane16_swap_b32 v{MI[0]}, v{MI[1]}')
        a(f'buffer_store_dwordx4 v[{Mi}:{Mi+3}], v5, s[8:11], s22 offen {SCY}')
    else:
        for b in range(3):
            dcv(b)
            a(f'buffer_store_dwordx2 v[{O+2*b}:{O+2*b+1}], v{1 if b < 2 else 2}, s[8:11], s21 offen offset:{512*b} {SCY}')
        m1(0); m1(1); m1(2)
        a('s_waitcnt lgkmcnt(0)')
        a(f'v_cndmask_b32 v{R}, v{R}, v{R+1}, s[50:51]')
        a(f'v_cndmask_b32 v{R+1}, v{R+1}, v{R+2}, s[50:51]')
        m0(0)
        a(f'buffer_store_dwordx2 v[{Mi}:{Mi+1}], v5, s[8:11], s22 offen offset:512 {SCY}')
        m0(1)
        a(f'buffer_store_dwordx2 v[{Mi+2}:{Mi+3}], v5, s[8:11], s22 offen {SCY}')
        m0(2)
        a(f'buffer_store_dwordx2 v[{Mi+4}:{Mi+5}], v30, s[8:11], s22 offen {SCY}')
    if 'tail' in OPT: st(a, 6)
    a('s_cmp_eq_u32 s20, 0')
    a('s_cbranch_scc1 L_eupd')
    a('L_fin:')
    if DIAG: diag.stamp_store(a, 0, 16, vb=100)
    a('L_end:')
    a('s_endpgm')
    a(f'''
    L_eupd:
    s_mov_b64 exec, 1
    s_mov_b32 s21, {EO}
    v_mov_b32 v30, s36
    buffer_store_dword v30, off, s[16:19], s21
    s_mov_b64 exec, -1
    s_branch L_fin
    ''')
    a('L_codeend:')
    return 128

def main(out):
    a = Asm(); nv = kernel(a); a.pad(True)
    s = f'''; FNet spectral mixing via MFMA FFT (single launch, folded input, tagged in-kernel hand-off)
; @launch grid=(256,1,1) block=(512,1,1) lds={LDS_TOTAL}
.amdgcn_target "amdgcn-amd-amdhsa--gfx950"
.text
.globl {KN}
.p2align 8
.type {KN},@function
''' + a.text()
    s += f'''.section .rodata,"a"
.p2align 6
.amdhsa_kernel {KN}
  .amdhsa_next_free_vgpr {nv}
  .amdhsa_next_free_sgpr {96 if DIAG else 56}
  .amdhsa_accum_offset {nv}
  .amdhsa_group_segment_fixed_size 0
  .amdhsa_kernarg_size 64
  .amdhsa_user_sgpr_count 2
  .amdhsa_user_sgpr_kernarg_segment_ptr 1
  .amdhsa_system_sgpr_workgroup_id_x 1
  .amdhsa_float_denorm_mode_32 3
.end_amdhsa_kernel
'''
    open(out, 'w').write(s)

main(sys.argv[1])
```

```python
import sys, struct, math
sys.path.insert(0, 'gen')
from asmlib import Asm
import diag
OPT = dict(a.split('=') for a in sys.argv[2:])
DIAG = 'st' in OPT
RSLEEP = int(OPT.get('rsleep', 0))
BOUND = int(OPT.get('bound', 0))
ROT = int(OPT.get('rot', 4))
SCY = OPT.get('scy', 'sc1').replace('+', ' ')
MM = OPT.get('mm', 'exec')
YX = int(OPT.get('yx', 1))
UX = int(OPT.get('ux', 3))
FRONT = 'front' in OPT
def st(a, k, front=False):
    if FRONT and k in (3, 4, 5) and not front: return
    if front and not FRONT: return
    if DIAG: diag.stamp(a, k)
def f32(x):
    return '0x%08x' % struct.unpack('<I', struct.pack('<f', x))[0]

NB = 2621440
EO = 128 * 16384
UB = EO + 128
TAGC = 0x9E3779B9
KN = 'standalone__spectral_fnet__prompt_kernel'
VS = 1408
SPEC = 324
LDS_V = 8192
LDS_C = 14336
LDS_TOTAL = LDS_C + 15 * 1024
G0, MA, G1, DA = 8, 24, 112, 96
SO = 86 if DIAG else 58
FC, TC, TS = 32, 68, 80
BR, BI = 92, 108

def kernel(a):
    a(f'{KN}:')
    if DIAG: diag.init(a)
    st(a, 0)
    X, M1, D = 8, 96, 112
    TA, TB = 20, 21
    a(f'''
    s_load_dwordx2 s[4:5], s[0:1], 0
    s_load_dwordx2 s[16:17], s[0:1], 56
    s_load_dwordx2 s[8:9], s[0:1], 40
    s_getpc_b64 s[24:25]
    L_pf:
    {'v_lshlrev_b32 v1, 3, v0' if OPT.get('pf', 'all') == 'all' else 'v_xor_b32 v1, 448, v0'}
    {'v_min_u32 v1, L_codeend-L_pf-4, v1' if OPT.get('pf', 'all') == 'all' else 'v_lshlrev_b32 v1, 6, v1'}
    s_mov_b32 s26, L_codeend-L_pf
    s_mov_b32 s27, 0x20000
    buffer_load_dword v11, v1, s[24:27], 0 offen
    s_lshr_b32 s13, s2, 4
    v_lshrrev_b32 v3, 6, v0
    s_min_u32 s14, s13, 14
    v_bfe_u32 v2, v0, 4, 2
    s_mul_i32 s15, s14, 43
    v_and_b32 v1, 3, v0
    s_lshr_b32 s15, s15, 7
    v_bfe_u32 v7, v0, 2, 2
    s_mul_i32 s23, s13, {ROT}
    v_add_u32 v{TB}, s23, v3
    s_mul_i32 s22, s15, 3
    v_and_b32 v{TB}, 7, v{TB}
    s_sub_u32 s14, s14, s22
    v_lshl_add_u32 v{TB}, v2, 5, v{TB}
    s_mul_i32 s14, s14, 21
    v_mul_u32_u24 v4, 20480, v{TB}
    s_lshr_b32 s14, s14, 1
    v_mad_u32_u24 v5, v7, 3, s14
    s_and_b32 s12, s2, 15
    v_add3_u32 v6, v5, v1, -1
    s_mul_i32 s28, s12, 1280
    v_min_u32 v19, 2, v1
    s_lshl_b32 s15, s15, 7
    v_med3_i32 v16, v6, 0, 31
    s_add_u32 s28, s28, s15
    v_add3_u32 v5, v5, v19, -1
    s_brev_b32 s43, 1
    v_lshl_add_u32 v16, v16, 2, v4
    s_add_u32 s29, s28, 163840
    v_max_i32 v23, 0, v5
    s_add_u32 s30, s28, {2*163840}
    v_lshl_add_u32 v4, v23, 2, v4
    s_add_u32 s31, s28, {3*163840}
    s_sub_u32 s22, {1665*1280-4}, s28
    s_mov_b32 s6, {NB}
    s_mov_b32 s7, s27
    v_sub_u32 v17, s22, v4
    s_mov_b32 s14, 163840
    v_add_u32 v18, {491520}, v17
    s_mov_b32 s15, {2*163840}
    v_subrev_u32 v19, s6, v18
    v_min_u32 v18, v18, v19
    s_cmp_ge_u32 s2, 256
    s_cbranch_scc1 L_end
    ''')
    if MM == 'exec':
        a(f'v_cmp_le_i32 vcc, 0, v5\n v_mov_b64 v[{X+4}:{X+5}], 0\n v_mov_b64 v[{X+6}:{X+7}], 0')
    if 'prio' in OPT:
        a('v_readfirstlane_b32 s20, v3\n s_nop 0\n s_cmp_ge_u32 s20, 4\n s_cbranch_scc1 L_np\n s_setprio 1\n L_np:')
    st(a, 3, True)
    EE = int(OPT.get('ee', 1))
    if EE: a(f's_mov_b32 s21, {EO}')
    for _ in range(int(OPT.get('np', 0))): a('s_nop 0')
    a('s_waitcnt lgkmcnt(0)')
    if EE == 1: a('s_load_dword s36, s[16:17], s21')
    if EE == 2: a('s_mov_b32 s36, 0x1234567')
    st(a, 4, True)
    a(f'''
    buffer_load_dword v{X}, v16, s[4:7], s28 offen
    buffer_load_dword v{X+1}, v16, s[4:7], s29 offen
    buffer_load_dword v{X+2}, v16, s[4:7], s30 offen
    buffer_load_dword v{X+3}, v16, s[4:7], s31 offen
    ''')
    if MM == 'exec': a('s_mov_b64 exec, vcc')
    a(f'''
    buffer_load_dword v{X+4}, v18, s[4:7], 0 offen
    buffer_load_dword v{X+5}, v17, s[4:7], s15 offen
    buffer_load_dword v{X+6}, v17, s[4:7], s14 offen
    buffer_load_dword v{X+7}, v17, s[4:7], 0 offen
    ''')
    if MM == 'exec': a('s_mov_b64 exec, -1')
    a(f'''
    v_ashrrev_i32 v125, 31, v5
    v_cmp_eq_u32 vcc, 31, v6
    v_and_b32 v124, {0x0302 ^ 0x0c0c}, v125
    v_mov_b32 v126, 0x0c0c0302
    v_xor_b32 v124, 0x05040302, v124
    v_not_b32 v125, v125
    v_cndmask_b32 v124, v124, v126, vcc
    ''')
    st(a, 5, True)
    a(f'''
    s_mov_b32 s18, {UB}
    s_mov_b32 s19, s27
    {'' if EE else f's_mov_b32 s21, {EO}'}
    {'' if EE else 's_buffer_load_dword s36, s[16:19], s21'}
    v_readfirstlane_b32 s20, v3
    s_mov_b32 s33, 0
    v_and_b32 v22, 15, v0
    v_and_b32 v{TA}, 1, v0
    v_bfe_u32 v23, v0, 1, 3
    v_lshl_add_u32 v{TA}, v{TA}, 3, v23
    v_cvt_f32_u32 v{TA}, v{TA}
    v_cvt_f32_u32 v{TB}, v{TB}
    v_mul_f32 v{TA}, {f32(1/128)}, v{TA}
    v_mul_f32 v{TB}, v{TB}, v{TA}
    v_mul_f32 v{TA}, {f32(8.0)}, v{TA}
    ''')
    for r in range(4):
        a(f'v_cos_f32 v{D+2*r}, v{TB}')
        a(f'v_sin_f32 v{D+1+2*r}, v{TB}')
        if r < 3: a(f'v_add_f32 v{TB}, v{TB}, v{TA}')
    a(f'''
    v_and_b32 v4, 1, v7
    v_lshlrev_b32 v4, 1, v4
    v_xor_b32 v4, v4, v2
    v_lshl_add_u32 v4, v1, 2, v4
    v_lshl_add_u32 v4, v7, 8, v4
    s_add_u32 s23, s23, s20
    s_bfe_u32 s21, s23, 0x20001
    s_lshl_b32 s21, s21, 7
    s_and_b32 s22, s23, 1
    s_lshl2_add_u32 s21, s22, s21
    v_lshl_add_u32 v4, v4, 3, s21
    ''')
    dec = f'''s_lshr_b32 s34, s2, 5
        s_lshl_b32 s34, s34, 3
        s_and_b32 s35, s2, 7
        s_or_b32 s34, s34, s35
        s_bfe_u32 s42, s2, 0x20003
        s_lshl_b32 s42, s42, 9
        s_and_b32 s35, s2, 0xf7
        s_cmp_eq_u32 s35, 16
        s_cselect_b32 s34, 64, s34
        s_cselect_b32 s35, 1024, 0
        s_sub_u32 s42, s42, s35
        s_add_u32 s42, s42, s34'''.split('\n')
    for r in range(4):
        c, s_ = D + 2 * r, D + 1 + 2 * r
        a(f'v_cvt_pk_bf16_f32 v{M1+r}, v{c}, v{s_}')
        a(dec[3*r])
        a(f'v_cvt_pk_bf16_f32 v{M1+4+r}, -v{s_}, v{c}')
        a(dec[3*r+1])
        a(f'v_cvt_pk_bf16_f32 v{M1+8+r}, v{s_}, v{c}')
        a(dec[3*r+2])
        a(f'v_cvt_pk_bf16_f32 v{M1+12+r}, v{c}, -v{s_}')
    a('''
    s_cmp_ge_u32 s20, 4
    s_cbranch_scc1 L_upper
    ''')
    F2, Q = 16, 24
    a(f'''
    v_cvt_f32_u32 v{TA}, v23
    v_and_b32 v{TB}, 1, v0
    v_cvt_f32_u32 v{TB}, v{TB}
    v_cvt_f32_u32 v22, v2
    v_mul_f32 v{TA}, {f32(0.125)}, v{TA}
    v_mul_f32 v{TB}, {f32(0.25)}, v{TB}
    v_add_f32 v22, v22, v22
    v_fma_f32 v{TB}, v22, v{TA}, v{TB}
    v_add_f32 v{TA}, v{TA}, v{TB}
    v_cos_f32 v22, v{TB}
    v_sin_f32 v23, v{TB}
    v_cos_f32 v18, v{TA}
    v_sin_f32 v19, v{TA}
    v_and_b32 v5, 63, v0
    s_and_b32 s22, s20, 1
    s_lshl_b32 s22, s22, 1
    v_xor_b32 v5, s22, v5
    s_lshl_b32 s21, s20, 11
    v_lshl_add_u32 v5, v5, 3, s21
    v_lshl_add_u32 v6, v2, 3, v3
    v_lshl_add_u32 v6, v6, 2, v7
    v_lshlrev_b32 v6, 14, v6
    v_lshl_add_u32 v6, v1, 4, v6
    v_cvt_pk_bf16_f32 v{F2}, v22, v23
    v_cvt_pk_bf16_f32 v{F2+1}, v18, v19
    s_lshl_b32 s28, s12, 10
    s_lshl_b32 s29, s13, 6
    s_add_u32 s28, s28, s29
    s_add_u32 s29, s28, {16*16384}
    s_branch L_stage1
    ''')
    C0 = 32; CC = 40; CS = 52
    a(f'''
    L_upper:
    ''')
    if 'gd' in OPT:
        a(f'''
        s_lshl4_add_u32 s21, s20, s13
        s_cmp_lg_u32 s21, 64
        s_cbranch_scc1 L_nops
        s_lshl_b32 s21, s12, 7
        s_add_u32 s21, s21, {EO+128}
        v_mov_b32 v127, s{diag.SB}
        s_mov_b64 exec, 1
        buffer_store_dword v127, off, s[16:19], s21 sc1
        s_mov_b64 exec, -1
        L_nops:
        ''')
    a(f'''
    s_and_b32 s21, s20, 3
    s_lshl_b32 s22, s21, 4
    s_cmp_eq_u32 s21, 3
    s_cselect_b32 s22, 0, s22
    s_mov_b32 s23, {f32(1/40)}
    s_cselect_b32 s23, {f32(1/640)}, s23
    v_add_u32 v{C0}, s22, v22
    v_cvt_f32_u32 v{C0}, v{C0}
    v_cvt_f32_u32 v{C0+1}, v2
    v_mul_f32 v{C0}, s23, v{C0}
    v_add_f32 v{C0+1}, v{C0+1}, v{C0+1}
    v_mul_f32 v{C0+1}, v{C0+1}, v{C0}
    v_add_f32 v{C0+2}, v{C0+1}, v{C0+1}
    v_fmamk_f32 v{C0+1}, v{C0}, {f32(32.0)}, v{C0+1}
    v_fmamk_f32 v{C0+3}, v{C0}, {f32(16.0)}, v{C0+2}
    v_and_b32 v{C0+4}, 63, v0
    s_mul_i32 s22, s21, 3072
    v_lshl_add_u32 v{C0+4}, v{C0+4}, 4, s22
    ''')
    for i in range(4):
        for base, off in ((C0 + 2, 0), (C0 + 3, 4), (C0 + 1, 8)):
            if off == 8 and i >= 2: continue
            a(f'v_cos_f32 v{CC+off+i}, v{base}')
            a(f'v_sin_f32 v{CS+off+i}, v{base}')
            if i < (1 if off == 8 else 3): a(f'v_add_f32 v{base}, v{base}, v{C0}')
    a('s_cbranch_scc1 L_craw')
    for j in range(10):
        a(f'v_cvt_pk_bf16_f32 v{CC+j}, v{CC+j}, v{CS+j}')
    a('s_branch L_cw')
    a('L_craw:')
    for k in range(3):
        a(f'ds_write_b128 v{C0+4}, v[{CS+4*k}:{CS+4*k+3}] offset:{LDS_C+3072+1024*k}')
    a('L_cw:')
    for k in range(3):
        a(f'ds_write_b128 v{C0+4}, v[{CC+4*k}:{CC+4*k+3}] offset:{LDS_C+1024*k}')
    a('L_stage1:')
    a('s_waitcnt vmcnt(4)')
    for r in range(4):
        a(f'v_mov_b32_dpp v{120+r}, v{X+r} quad_perm:[1,2,3,3] row_mask:0xf bank_mask:0xf')
    for r in range(4):
        a(f'v_perm_b32 v{X+r}, v{120+r}, v{X+r}, v124')
    a('s_waitcnt vmcnt(0)')
    st(a, 1)
    a(f'''
    v_mfma_f32_16x16x32_bf16 v[{D}:{D+3}], v[{X+4}:{X+7}], v[{M1+8}:{M1+11}], 0
    v_mfma_f32_16x16x32_bf16 v[{D+4}:{D+7}], v[{X+4}:{X+7}], v[{M1+12}:{M1+15}], 0
    v_mfma_f32_16x16x32_bf16 v[{D}:{D+3}], v[{X}:{X+3}], v[{M1}:{M1+3}], v[{D}:{D+3}]
    v_mfma_f32_16x16x32_bf16 v[{D+4}:{D+7}], v[{X}:{X+3}], v[{M1+4}:{M1+7}], v[{D+4}:{D+7}]
    s_cmp_ge_u32 s20, 4
    ''') if OPT.get('s1', 'a') == 'b' else None
    if OPT.get('s1', 'a') == 'a':
        a.lines.pop() if not DIAG else (a.lines.pop(), a.lines.pop())
        a(f'''
        v_mfma_f32_16x16x32_bf16 v[{D}:{D+3}], v[{X}:{X+3}], v[{M1}:{M1+3}], 0
        v_mfma_f32_16x16x32_bf16 v[{D+4}:{D+7}], v[{X}:{X+3}], v[{M1+4}:{M1+7}], 0
        s_waitcnt vmcnt(0)
        ''')
        st(a, 1)
        if MM == 'and':
            for r in range(4): a(f'v_and_b32 v{X+4+r}, v125, v{X+4+r}')
        a(f'''
        v_mfma_f32_16x16x32_bf16 v[{D}:{D+3}], v[{X+4}:{X+7}], v[{M1+8}:{M1+11}], v[{D}:{D+3}]
        v_mfma_f32_16x16x32_bf16 v[{D+4}:{D+7}], v[{X+4}:{X+7}], v[{M1+12}:{M1+15}], v[{D+4}:{D+7}]
        s_cmp_ge_u32 s20, 4
        ''')
    for i in range(3):
        a(f'v_cvt_pk_bf16_f32 v{X+i}, v{D+i}, v{D+4+i}')
        a(f'ds_write_b32 v4, v{X+i} offset:{512*i}')
    a(f'''
    s_waitcnt lgkmcnt(0)
    s_barrier
    s_cbranch_scc1 L_cons
    ''')
    for T in range(3):
        a(f'ds_read_b64 v[{X+2*T}:{X+2*T+1}], v5 offset:{512*T}')
    a(f's_add_u32 s36, s36, {TAGC}')
    a(f'v_mov_b32 v{Q+3}, s36')
    a(f'v_mov_b32 v{Q+7}, s36')
    for T in range(3):
        a(f's_waitcnt lgkmcnt({2-T})')
        a(f'v_mfma_f32_16x16x16_bf16 v[{M1+4*T}:{M1+4*T+3}], v[{F2}:{F2+1}], v[{X+2*T}:{X+2*T+1}], 0')
    for T in range(2):
        for e in range(2):
            a(f'v_cvt_pk_bf16_f32 v{Q+4*e+T}, v{M1+4*T+2*e}, v{M1+4*T+2*e+1}')
    for e in range(2):
        a(f'v_cvt_pk_bf16_f32 v{Q+4*e+2}, v{M1+8+2*e}, v{M1+8+2*e+1}')
        a(f'buffer_store_dwordx4 v[{Q+4*e}:{Q+4*e+3}], v6, s[16:19], s{28+e} offen sc1')
    st(a, 2)
    if OPT.get('gate', 'ack') == 'ack': a('s_waitcnt vmcnt(0)')
    a('''
    s_barrier
    s_or_b32 s22, s20, s2
    s_cbranch_scc1 L_fin
    s_movk_i32 s42, 1024
    s_branch L_rdc
    ''')
    T0 = 68
    a('L_cons:')
    st(a, 2)
    if 'gd' in OPT:
        a(f'v_lshlrev_b32 v126, 7, v22\n s_mov_b32 s21, {EO+128}\n buffer_load_dword v127, v126, s[16:19], s21 offen sc1')
    a(f'''
    s_add_u32 s36, s36, {TAGC}
    s_sub_u32 s35, 128, s34
    ''')
    for d, t in ((38, 34), (40, 35)):
        a(f'''s_and_b32 s{d}, s{t}, 0x70
        s_and_b32 s21, s{t}, 7
        s_lshl1_add_u32 s{d}, s21, s{d}
        s_bfe_u32 s21, s{t}, 0x10003
        s_add_u32 s{d}, s{d}, s21
        s_lshl_b32 s{d}, s{d}, 14
        s_add_u32 s{d+1}, s{d}, 8192''')
    a(f'''
    v_and_b32 v{T0}, 3, v3
    v_lshlrev_b32 v5, 11, v2
    v_lshl_add_u32 v5, v{T0}, 8, v5
    v_lshl_add_u32 v5, v22, 4, v5
    v_lshl_add_u32 v{T0}, v{T0}, 2, v7
    v_min_u32 v{T0}, 14, v{T0}
    v_mul_u32_u24 v{T0+1}, 43, v{T0}
    v_lshrrev_b32 v{T0+1}, 7, v{T0+1}
    v_mad_i32_i24 v{T0}, v{T0+1}, -3, v{T0}
    v_mul_u32_u24 v{T0}, 21, v{T0}
    v_lshrrev_b32 v{T0}, 1, v{T0}
    v_mad_u32_u24 v{T0}, v1, 3, v{T0}
    v_lshl_add_u32 v{T0+2}, v{T0+1}, 5, v{T0}
    v_cmp_eq_u32 vcc, 0, v{T0}
    v_cmp_ne_u32 s[46:47], 0, v{T0+1}
    v_add_u32 v{T0+1}, {SPEC//2}, v{T0+1}
    v_mul_u32_u24 v6, {VS}, v2
    s_and_b64 vcc, vcc, s[46:47]
    v_cndmask_b32 v{T0+1}, v{T0+2}, v{T0+1}, vcc
    v_lshl_add_u32 v4, v{T0+1}, 3, v6
    v_lshl_add_u32 v6, v{T0+2}, 3, v6
    v_and_b32 v{T0+1}, 1, v0
    s_cmp_eq_u32 s2, 0
    s_cselect_b32 s31, 1, 99
    v_and_b32 v{T0+2}, 13, v0
    v_cmp_eq_u32 vcc, s31, v{T0+2}
    v_lshlrev_b32 v{T0+3}, 1, v2
    v_cvt_f32_u32 v{T0+3}, v{T0+3}
    v_bfe_u32 v{T0+2}, v0, 1, 1
    v_cndmask_b32 v{T0}, v7, 8, vcc
    v_cndmask_b32 v{T0+1}, v{T0+1}, 0, vcc
    v_lshl_add_u32 v{T0}, v{T0}, 7, s42
    v_cvt_f32_u32 v{T0}, v{T0}
    v_mul_f32 v{T0}, {f32(1/2048)}, v{T0}
    v_add_u32 v{T0+1}, v{T0+1}, v{T0+2}
    v_cvt_f32_u32 v{T0+1}, v{T0+1}
    v_mul_f32 v{T0+1}, {f32(0.25)}, v{T0+1}
    v_fma_f32 v{T0+1}, v{T0}, v{T0+3}, v{T0+1}
    v_add_f32 v{T0+3}, v{T0+1}, v{T0}
    v_cos_f32 v{T0+4}, v{T0+1}
    v_sin_f32 v{T0+5}, v{T0+1}
    v_cos_f32 v{T0+6}, v{T0+3}
    v_sin_f32 v{T0+7}, v{T0+3}
    v_fmamk_f32 v{T0+1}, v{T0}, {f32(8.0)}, v{T0+1}
    v_fmamk_f32 v{T0+3}, v{T0}, {f32(8.0)}, v{T0+3}
    v_cos_f32 v{T0+8}, v{T0+1}
    v_sin_f32 v{T0+9}, v{T0+1}
    v_cos_f32 v{T0+10}, v{T0+3}
    v_sin_f32 v{T0+11}, v{T0+3}
    v_lshlrev_b32 v{T0+2}, 4, v{T0+2}
    v_lshrrev_b32 v{T0+2}, v{T0+2}, s43
    ''')
    for k in range(4):
        a(f'v_pk_mul_f32 v[{T0+4+2*k}:{T0+5+2*k}], v[{T0+4+2*k}:{T0+5+2*k}], 0.5 op_sel_hi:[1,0]')
    for k in range(4):
        a(f'v_cvt_pk_bf16_f32 v{MA+2*k}, v{T0+4+2*k}, v{T0+5+2*k}')
    for k in range(4):
        a(f'v_xor_b32 v{MA+2*k+1}, v{MA+2*k}, v{T0+2}')
    if 'gd' in OPT:
        a('s_waitcnt vmcnt(0)')
        a(f'v_subrev_u32 v127, s{diag.SB}, v127')
        a('s_mov_b32 s46, 0')
        for l in range(16):
            a(f'v_readlane_b32 s47, v127, {l}\n s_nop 0\n s_cmp_gt_i32 s47, 200\n s_cselect_b32 s47, 0, s47\n s_max_i32 s46, s46, s47')
        a(f'''s_add_u32 s46, s46, {OPT['gd']}
        L_dly:
        s_memrealtime s[44:45]
        s_waitcnt lgkmcnt(0)
        s_sub_u32 s44, s44, s{diag.SB}
        s_cmp_lt_u32 s44, s46
        s_cbranch_scc1 L_dly''')
    a('s_barrier')
    st(a, 3)
    LR = [G0, G1]
    def uloads():
        for kh in range(2):
            for k in range(4):
                a(f'buffer_load_dwordx4 v[{LR[kh]+4*k}:{LR[kh]+4*k+3}], v5, s[16:19], s{(38 if k % 2 == 0 else 40)+kh} offen offset:{1024*(k>>1)} sc1')
    uloads()
    T0 = DA
    a(f'''
    L_rdc:
    v_and_b32 v{T0}, 63, v0
    v_lshlrev_b32 v{T0+1}, 4, v{T0}
    ''')
    for k in range(15):
        if k % 3 == 2:
            a(f'ds_read_b64 v[{FC+4*k}:{FC+4*k+1}], v{T0+1} offset:{LDS_C+1024*k}')
        else:
            a(f'ds_read_b128 v[{FC+4*k}:{FC+4*k+3}], v{T0+1} offset:{LDS_C+1024*k}')
    AMI, AM2, ABP, ASP, AIN = FC + 10, FC + 11, FC + 22, FC + 23, FC + 34
    a(f'''
    v_add_u32 v{ABP}, 16, v{T0}
    v_and_b32 v{T0}, 15, v0
    v_cvt_f32_u32 v{T0+1}, v{T0}
    v_cvt_f32_u32 v{T0+2}, v2
    v_mul_f32 v{T0+1}, {f32(1/16)}, v{T0+1}
    v_add_f32 v{T0+2}, v{T0+2}, v{T0+2}
    v_mul_f32 v{T0+2}, v{T0+2}, v{T0+1}
    v_add_f32 v{T0+1}, v{T0+1}, v{T0+2}
    v_cos_f32 v{T0+3}, v{T0+2}
    v_sin_f32 v{T0+4}, v{T0+2}
    v_cos_f32 v{T0+5}, v{T0+1}
    v_sin_f32 v{T0+6}, v{T0+1}
    s_and_b32 s25, s20, 3
    s_mul_i32 s24, s25, {VS}
    s_add_u32 s24, s24, {LDS_V+4}
    v_min_u32 v1, 1, v1
    v_lshl_add_u32 v7, v7, 1, v1
    v_mul_u32_u24 v3, 320, v2
    v_add_u32 v3, s24, v3
    v_lshl_add_u32 v7, v7, 2, v3
    v_lshl_add_u32 v3, v{T0}, 2, v3
    v_lshl_add_u32 v{ASP}, v2, 3, s24
    v_mov_b32 v{AIN}, s24
    v_lshlrev_b32 v1, 3, v2
    v_lshl_add_u32 v1, v{T0}, 5, v1
    v_lshlrev_b32 v2, 28, v{T0}
    v_and_or_b32 v2, v2, s43, v1
    v_cvt_pk_bf16_f32 v{BR}, v{T0+3}, v{T0+4}
    v_cvt_pk_bf16_f32 v{BR+1}, v{T0+5}, v{T0+6}
    v_cvt_pk_bf16_f32 v{BI}, -v{T0+4}, v{T0+3}
    v_cvt_pk_bf16_f32 v{BI+1}, -v{T0+6}, v{T0+5}
    s_lshl_b32 s21, s25, 7
    s_add_u32 s21, s21, s42
    s_sub_u32 s22, 2048, s21
    s_mul_i32 s22, s22, 1280
    s_lshr_b32 s27, s21, 6
    s_and_b32 s23, s21, 1023
    s_cselect_b32 s22, s22, 0
    s_cselect_b32 s23, 0, s43
    s_cselect_b32 s26, -1, 0xffff
    s_cselect_b32 s27, 0, s27
    s_mul_i32 s21, s21, 1280
    s_mul_i32 s25, s27, 0x202000
    s_add_u32 s25, s25, 0x01000c0c
    s_mov_b32 s50, 0
    s_mov_b32 s51, s43
    v_sub_u32 v{AM2}, 248, v1
    v_and_b32 v{AM2}, 0x80000fff, v{AM2}
    v_and_b32 v{AMI}, 8, v1
    v_mad_u32_u24 v1, v{AMI}, 63, v1
    v_sub_u32 v{AMI}, 1264, v1
    v_or_b32 v{AMI}, s23, v{AMI}
    v_or_b32 v{AM2}, s23, v{AM2}
    v_lshrrev_b32 v{T0}, 6, v{ABP}
    v_and_b32 v{ABP}, 63, v{ABP}
    v_add_lshl_u32 v{ABP}, v{ABP}, v{T0}, 2
    v_cndmask_b32 v{ABP}, v{ABP}, 0, s[50:51]
    s_mov_b32 s10, {NB}
    s_mov_b32 s11, 0x20000
    s_mov_b64 s[44:45], 0x1000000
    s_movk_i32 s52, 0x100
    s_mov_b32 s53, 0x10000
    s_mov_b32 s54, 0
    s_mov_b32 s55, 1
    s_mov_b32 s56, 0x00ff00ff
    s_mov_b32 s57, s56
    s_mov_b32 vcc_lo, -1
    s_mov_b32 vcc_hi, 0
    ''')
    for r in (BR, BR + 1, BI, BI + 1):
        a(f'v_and_b32 v{r}, s26, v{r}')
    for r in (BR, BR + 1, BI, BI + 1):
        a(f'v_lshlrev_b32 v{r}, s27, v{r}')
    a(f'''
    v_mov_b32 v{BR+3}, 0
    v_mov_b32 v{BI+3}, 0
    v_cndmask_b32 v{BR+2}, v{BR}, v{BR+1}, vcc
    v_cndmask_b32 v{BI+2}, v{BI}, v{BI+1}, vcc
    s_mov_b64 s[46:47], -1
    s_cmp_lg_u32 s20, 0
    s_cbranch_scc1 L_wait
    s_branch L_b3
    L_retry:
    s_wqm_b64 s[46:47], s[48:49]
    s_mov_b64 exec, s[46:47]
    ''')
    if BOUND:
        a(f'''s_add_u32 s33, s33, 1
        s_cmp_ge_u32 s33, {BOUND}
        s_cbranch_scc1 L_go''')
    if RSLEEP: a(f's_sleep {RSLEEP}')
    if DIAG: a(f's_add_u32 s{diag.SB+12}, s{diag.SB+12}, 1')
    uloads()
    a('L_wait:')
    def shuffle(G):
        a(f'''
        v_swap_b32 v{G+1}, v{G+4}
        v_swap_b32 v{G+2}, v{G+8}
        v_mov_b32 v{G+3}, v{G+12}
        v_swap_b32 v{G+6}, v{G+9}
        v_mov_b32 v{G+7}, v{G+13}
        v_mov_b32 v{G+11}, v{G+14}
        ''')
    def amfma(kh):
        for T in range(3):
            c = '0' if kh == 0 else f'v[{DA+4*T}:{DA+4*T+3}]'
            a(f'v_mfma_f32_16x16x32_bf16 v[{DA+4*T}:{DA+4*T+3}], v[{MA+4*kh}:{MA+4*kh+3}], v[{LR[kh]+4*T}:{LR[kh]+4*T+3}], {c}')
    for kh in range(2):
        G = LR[kh]
        after = {1: [f'v_swap_b32 v{G+1}, v{G+4}'], 2: [f'v_swap_b32 v{G+2}, v{G+8}', f'v_swap_b32 v{G+6}, v{G+9}'],
                 3: [f'v_mov_b32 v{G+3}, v{G+12}', f'v_mov_b32 v{G+7}, v{G+13}', f'v_mov_b32 v{G+11}, v{G+14}']}
        for k in range(4):
            a(f's_waitcnt vmcnt({7-4*kh-k})')
            a(f'v_cmpx_eq_u32 vcc, s36, v{G+4*k+3}')
            for l in after.get(k, []): a(l)
        if kh == 0:
            a('s_mov_b64 exec, -1')
            amfma(0)
            a('s_mov_b64 exec, vcc')
    a('s_andn2_b64 s[48:49], s[46:47], vcc')
    a('s_cbranch_scc1 L_retry')
    a('L_go:')
    a('s_mov_b64 exec, -1')
    st(a, 4)
    amfma(1)
    VO, Y, P, INI, TT = 8, 8, 20, 4, 30
    DB = [96, 112, 120]
    TT = 104
    for T in range(3):
        for pi in range(2):
            a(f'v_cvt_pk_bf16_f32 v{20+2*T+pi}, v{DA+4*T+2*pi}, v{DA+4*T+2*pi+1}')
        a(f'ds_write_b64 v{4 if T == 0 else 6}, v[{20+2*T}:{21+2*T}] offset:{LDS_V+8*T}')
    INI = 28
    a(f'''
    L_b3:
    v_mov_b32 v{VO+3}, 0
    v_mov_b32 v{VO+7}, 0
    v_mov_b32 v{VO+11}, 0
    s_waitcnt lgkmcnt(0)
    s_barrier
    ''')
    if DIAG:
        st(a, 5); a('s_waitcnt lgkmcnt(0)')
    a(f'''
    ds_read_b32 v{VO+10}, v{ASP} offset:{4*(SPEC+2)}
    ds_read2_b32 v[{VO}:{VO+1}], v3 offset0:0 offset1:40
    ds_read2_b32 v[{VO+4}:{VO+5}], v3 offset0:16 offset1:56
    ds_read2_b32 v[{VO+8}:{VO+9}], v7 offset0:32 offset1:72
    ds_read_b32 v{INI}, v{AIN} offset:1280
    s_waitcnt lgkmcnt(4)
    v_cndmask_b32 v{VO+2}, 0, v{VO+10}, s[44:45]
    v_cndmask_b32 v{VO+6}, 0, v{VO+10}, s[52:53]
    v_cndmask_b32 v{VO+10}, 0, v{VO+10}, s[54:55]
    ''')
    def tw(t):
        n = 4 if t < 2 else 2
        o = []
        for r in range(n): o.append(f'v_mul_f32 v{TT+r}, v{DB[t]+r}, v{TC+4*t+r}')
        for r in range(n): o.append(f'v_fmac_f32 v{TT+r}, v{DB[t]+4+r}, v{TS+4*t+r}')
        for r in range(n): o.append(f'v_mul_f32 v{DB[t]+4+r}, v{DB[t]+4+r}, v{TC+4*t+r}')
        for r in range(n): o.append(f'v_fma_f32 v{DB[t]+4+r}, -v{DB[t]+r}, v{TS+4*t+r}, v{DB[t]+4+r}')
        for r in range(n): o.append(f'v_cvt_pk_bf16_f32 v{PP[t]+r}, v{TT+r}, v{DB[t]+4+r}')
        return o
    PP = [20, 24, 4]
    def cm(t, b):
        n = 4 if t < 2 else 2
        c = f'v[{INI}:{INI+3}]' if t == 0 else f'v[{Y+4*b}:{Y+4*b+3}]'
        mn = 'v_mfma_f32_16x16x32_bf16' if t < 2 else 'v_mfma_f32_16x16x16_bf16'
        return f'{mn} v[{Y+4*b}:{Y+4*b+3}], v[{PP[t]}:{PP[t]+n-1}], v[{FC+12*b+4*t}:{FC+12*b+4*t+n-1}], {c}'
    def bm(t, p):
        return f'v_mfma_f32_16x16x32_bf16 v[{DB[t]+4*p}:{DB[t]+4*p+3}], v[{VO+4*t}:{VO+4*t+3}], v[{(BR, BI)[p]}:{(BR, BI)[p]+3}], 0'
    ini = [f'v_perm_b32 v{INI}, v{INI}, v{INI}, s25', f'v_xor_b32 v{INI+1}, s43, v{INI}', f'v_mov_b64 v[{INI+2}:{INI+3}], v[{INI}:{INI+1}]']
    if int(OPT.get('ts', 1)):
        w = tw(0)
        a('s_waitcnt lgkmcnt(3)'); a(bm(0, 0)); a(bm(0, 1))
        a('s_waitcnt lgkmcnt(2)'); a(bm(1, 0))
        a('s_waitcnt lgkmcnt(0)')
        for l in ini: a(l)
        a(bm(1, 1))
        for l in w[0:4]: a(l)
        a(bm(2, 0))
        for l in w[4:8]: a(l)
        a(bm(2, 1))
        for l in w[8:]: a(l)
    else:
        for t in range(3):
            a(f's_waitcnt lgkmcnt({3-t})'); a(bm(t, 0)); a(bm(t, 1))
        a('s_waitcnt lgkmcnt(0)')
        for l in ini: a(l)
        for l in tw(0): a(l)
    for t in (1, 2):
        w = tw(t)
        k = 0
        for b in range(3):
            a(w[k]); a(w[k+1]); k += 2
            a(cm(t - 1, b))
        for l in w[k:]: a(l)
    for b in range(3): a(cm(2, b))
    if 'tail' in OPT: st(a, 2)
    O = 96; R = 104; Mi = 112
    for b in range(3):
        a(f'ds_bpermute_b32 v{R+b}, v{ABP}, v{Y+4*b}')
    MI = [Mi + 2, Mi, Mi + 4]
    for b in range(3):
        a(f'v_cvt_pk_bf16_f32 v{O+2*b}, v{Y+4*b}, v{Y+4*b+1}')
        a(f'v_cvt_pk_bf16_f32 v{O+2*b+1}, v{Y+4*b+2}, v{Y+4*b+3}')
    a(f'v_permlane16_swap_b32 v{O}, v{O+2}')
    a(f'v_permlane16_swap_b32 v{O+1}, v{O+3}')
    a(f'buffer_store_dwordx4 v[{O}:{O+3}], v1, s[8:11], s21 offen {SCY}')
    if YX: a('s_mov_b64 exec, s[56:57]')
    a(f'buffer_store_dwordx2 v[{O+4}:{O+5}], v2, s[8:11], s21 offen offset:1024 {SCY}')
    if YX: a('s_mov_b64 exec, -1')
    for b in range(3):
        a(f'v_cvt_pk_bf16_f32 v{MI[b]+1}, v{Y+4*b+2}, v{Y+4*b+1}')
    a('s_waitcnt lgkmcnt(0)')
    a(f'v_cndmask_b32 v{R}, v{R}, v{R+1}, s[50:51]')
    a(f'v_cndmask_b32 v{R+1}, v{R+1}, v{R+2}, s[50:51]')
    a(f'v_permlane16_swap_b32 v{MI[0]+1}, v{MI[1]+1}')
    for b in range(3):
        a(f'v_cvt_pk_bf16_f32 v{MI[b]}, v{R+b}, v{Y+4*b+3}')
    if YX:
        a(f'v_permlane16_swap_b32 v{MI[0]}, v{MI[1]}')
        a(f'buffer_store_dwordx4 v[{Mi}:{Mi+3}], v{AMI}, s[8:11], s22 offen {SCY}')
        a('s_mov_b64 exec, s[56:57]')
        a(f'buffer_store_dwordx2 v[{MI[2]}:{MI[2]+1}], v{AM2}, s[8:11], s22 offen {SCY}')
        if DIAG: a('s_mov_b64 exec, -1')
    else:
        a(f'buffer_store_dwordx2 v[{MI[2]}:{MI[2]+1}], v{AM2}, s[8:11], s22 offen {SCY}')
        a(f'v_permlane16_swap_b32 v{MI[0]}, v{MI[1]}')
        a(f'buffer_store_dwordx4 v[{Mi}:{Mi+3}], v{AMI}, s[8:11], s22 offen {SCY}')
    if 'tail' in OPT: st(a, 6)
    a('s_cmp_eq_u32 s20, 0')
    a('s_cbranch_scc1 L_eupd')
    a('L_fin:')
    if DIAG: diag.stamp_store(a, 0, 16, vb=100)
    a('L_end:')
    a('s_endpgm')
    a(f'''
    L_eupd:
    s_mov_b64 exec, 1
    s_mov_b32 s21, {EO}
    v_mov_b32 v30, s36
    buffer_store_dword v30, off, s[16:19], s21 sc1
    s_mov_b64 exec, -1
    s_branch L_fin
    L_codeend:
    ''')
    return 128

def main(out):
    a = Asm(); nv = kernel(a); a.pad(True)
    s = f'''; FNet spectral mixing via MFMA FFT (single launch, folded input, tagged in-kernel hand-off)
; @launch grid=(256,1,1) block=(512,1,1) lds={LDS_TOTAL}
.amdgcn_target "amdgcn-amd-amdhsa--gfx950"
.text
.globl {KN}
.p2align 8
.type {KN},@function
''' + a.text()
    s += f'''.section .rodata,"a"
.p2align 6
.amdhsa_kernel {KN}
  .amdhsa_next_free_vgpr {nv}
  .amdhsa_next_free_sgpr {96 if DIAG else 58}
  .amdhsa_accum_offset {nv}
  .amdhsa_group_segment_fixed_size 0
  .amdhsa_kernarg_size 64
  .amdhsa_user_sgpr_count 2
  .amdhsa_user_sgpr_kernarg_segment_ptr 1
  .amdhsa_system_sgpr_workgroup_id_x 1
  .amdhsa_float_denorm_mode_32 3
.end_amdhsa_kernel
'''
    open(out, 'w').write(s)

main(sys.argv[1])
```

```python
import sys, re
src = open(sys.argv[1]).read()
mult = int(sys.argv[3])
KN = 'standalone__spectral_fnet__prompt_kernel'
src = src.replace(f'{KN}:\n', f'{KN}:\n    s_memrealtime s[68:69]\n', 1)
src = src.replace('L_fin:\n', '''L_fin:
    s_cmp_lg_u32 s20, 1
    s_cbranch_scc1 L_end
    s_add_u32 s64, s16, 0x800000
    s_addc_u32 s65, s17, 0
    s_mov_b32 s66, 65536
    s_mov_b32 s67, 0x20000
    s_lshl_b32 s70, s2, 7
    v_mov_b32 v1, s68
    s_mov_b64 exec, 1
    buffer_store_dword v1, off, s[64:67], s70 sc1
''', 1)
src = re.sub(r'\.amdhsa_next_free_sgpr \d+', '.amdhsa_next_free_sgpr 72', src)
src = re.sub(r'; @launch grid', f'; @launch kernel={KN} grid', src)
lines = src.split('\n')
last = max(i for i, l in enumerate(lines) if l.startswith('; @launch'))
lines.insert(last + 1, '; @launch kernel=kd_kernel grid=(1,1,1) block=(64,1,1) lds=0')
src = '\n'.join(lines)
code = f'''.globl kd_kernel
.fill 2048, 4, 0xbf800000
.p2alignl 12, 0xbf800000
.p2align 8
.type kd_kernel,@function
kd_kernel:
    s_memrealtime s[22:23]
    s_cmp_ge_u32 s2, 1
    s_cbranch_scc1 L_endd
    s_load_dwordx2 s[4:5], s[0:1], 56
    s_load_dwordx2 s[8:9], s[0:1], 48
    s_waitcnt lgkmcnt(0)
    s_add_u32 s4, s4, 0x800000
    s_addc_u32 s5, s5, 0
    s_mov_b32 s6, 65536
    s_mov_b32 s7, 0x20000
    s_mov_b32 s10, 256
    s_mov_b32 s11, 0x20000
    v_lshlrev_b32 v1, 9, v0
    buffer_load_dword v10, v1, s[4:7], 0 offen
    buffer_load_dword v11, v1, s[4:7], 0 offen offset:128
    buffer_load_dword v12, v1, s[4:7], 0 offen offset:256
    buffer_load_dword v13, v1, s[4:7], 0 offen offset:384
    s_waitcnt vmcnt(0)
    v_min_u32 v10, v10, v11
    v_min3_u32 v10, v10, v12, v13
    s_mov_b32 s20, -1
    s_mov_b32 s12, 0
L_lane:
    s_nop 3
    v_readlane_b32 s13, v10, s12
    s_nop 1
    s_min_u32 s20, s20, s13
    s_add_u32 s12, s12, 1
    s_cmp_lt_u32 s12, 64
    s_cbranch_scc1 L_lane
    s_sub_u32 s13, s22, s20
    v_mov_b32 v4, s13
    v_mov_b32 v5, 0
    buffer_store_dword v4, v5, s[8:11], 0 offen
    s_min_u32 s13, s13, 3000
    s_mul_i32 s13, s13, {mult}
    s_add_u32 s13, s13, 3000
L_spin:
    s_memrealtime s[14:15]
    s_waitcnt lgkmcnt(0)
    s_sub_u32 s14, s14, s20
    s_cmp_lt_u32 s14, s13
    s_cbranch_scc1 L_spin
L_endd:
    s_endpgm
'''
src = src.replace('.section .rodata,"a"\n', code + '.section .rodata,"a"\n', 1)
src += '''.p2align 6
.amdhsa_kernel kd_kernel
  .amdhsa_next_free_vgpr 64
  .amdhsa_next_free_sgpr 32
  .amdhsa_accum_offset 64
  .amdhsa_group_segment_fixed_size 0
  .amdhsa_kernarg_size 64
  .amdhsa_user_sgpr_count 2
  .amdhsa_user_sgpr_kernarg_segment_ptr 1
  .amdhsa_system_sgpr_workgroup_id_x 1
.end_amdhsa_kernel
'''
open(sys.argv[2], 'w').write(src)
```

```python
import sys, struct, math
sys.path.insert(0, 'gen')
from asmlib import Asm
import diag
OPT = dict(a.split('=') for a in sys.argv[2:])
DIAG = 'st' in OPT
RSLEEP = int(OPT.get('rsleep', 0))
BOUND = int(OPT.get('bound', 0))
ROT = int(OPT.get('rot', 4))
SCY = OPT.get('scy', 'sc1').replace('+', ' ')
MM = OPT.get('mm', 'exec')
YX = int(OPT.get('yx', 1))
UX = int(OPT.get('ux', 3))
XF = OPT.get('xf', 'nt').replace('+', ' ')
WO = int(OPT.get('wo', 0))
UF = OPT.get('uf', 'sc1').replace('+', ' ')
UL = OPT.get('ul', 'sc1').replace('+', ' ')
FRONT = 'front' in OPT
def st(a, k, front=False):
    if FRONT and k in (3, 4, 5) and not front: return
    if front and not FRONT: return
    if DIAG: diag.stamp(a, k)
def f32(x):
    return '0x%08x' % struct.unpack('<I', struct.pack('<f', x))[0]

NB = 2621440
EO = 128 * 16384
UB = EO + 128
TAGC = 0x9E3779B9
KN = 'standalone__spectral_fnet__prompt_kernel'
VS = 1408
SPEC = 324
LDS_V = 8192
LDS_C = 14336
LDS_TOTAL = LDS_C + 15 * 1024
G0, MA, G1, DA = 8, 24, 112, 96
SO = 86 if DIAG else 58
FC, TC, TS = 32, 68, 80
BR, BI = 92, 108

def kernel(a):
    a(f'{KN}:')
    if DIAG: diag.init(a)
    st(a, 0)
    X, M1, D = 8, 96, 112
    TA, TB = 20, 21
    PFP = OPT.get('pfp', 'first')
    def prefetch(dst):
        a(f'''
        ; pull the rest of this kernel's code towards L2 (value unused)
        s_getpc_b64 s[24:25]
        L_pf:
        v_lshlrev_b32 v126, 3, v0
        v_min_u32 v126, L_codeend-L_pf-4, v126
        v_mov_b32 v127, 0
        v_lshl_add_u64 v[126:127], v[126:127], 0, s[24:25]
        global_load_dword v{dst}, v[126:127], off
        ''')
    a('''
    s_load_dwordx2 s[4:5], s[0:1], 0
    s_load_dwordx2 s[16:17], s[0:1], 56
    ''')
    if PFP == 'first': prefetch(122)
    if PFP == 'sf':
        a(f"s_cmp_ge_u32 s2, {OPT.get('sfn', 16)}\n s_cbranch_scc1 L_nopf")
        prefetch(11)
        a('L_nopf:')
    a('; rows s = 128*n1 + 16*n2 + rho (direct) and -s mod 2048 (mirror); every load stays inside one 128-B line')
    XB, M1B, DB2 = 64, 72, 88
    a(f"""
    v_lshrrev_b32 v3, 6, v0
    s_lshr_b32 s13, s2, 4
    v_bfe_u32 v2, v0, 4, 2
    s_and_b32 s23, s13, 1
    v_readfirstlane_b32 s20, v3
    s_min_u32 s14, s13, 14
    v_lshl_add_u32 v{TB}, v3, 1, s23
    s_mulk_i32 s14, 683
    v_and_b32 v22, 15, v0
    s_lshr_b32 s14, s14, 6
    v_bfe_u32 v7, v0, 2, 2
    s_cmp_ge_u32 s13, 16
    s_cbranch_scc1 L_end
    s_cmp_ge_u32 s20, 4
    s_cbranch_scc1 L_aux
    s_and_b32 s15, s14, 31
    v_lshl_add_u32 v{TB}, v2, 5, v{TB}
    s_sub_u32 s14, s14, s15
    v_sub_u32 v6, v22, v7
    s_and_b32 s12, s2, 15
    v_mul_u32_u24 v4, 20480, v{TB}
    s_mul_i32 s28, s12, 1280
    v_add3_u32 v6, v6, s15, -1
    s_lshl2_add_u32 s28, s14, s28
    v_med3_i32 v16, v6, 0, 31
    s_mov_b32 s14, 163840
    v_cmp_le_i32 vcc, 0, v6
    s_add_u32 s29, s28, s14
    v_lshl_add_u32 v16, v16, 2, v4
    s_add_u32 s30, s29, s14
    v_mov_b64 v[{X+4}:{X+5}], 0
    s_add_u32 s31, s30, s14
    v_mov_b64 v[{X+6}:{X+7}], 0
    s_sub_u32 s22, {1665*1280-4}, s28
    v_mov_b64 v[{XB+4}:{XB+5}], 0
    s_lshl_b32 s6, s14, 4
    v_sub_u32 v17, s22, v16
    s_mov_b32 s7, 0x20000
    v_add_u32 v18, {491520}, v17
    s_lshl_b32 s15, s14, 1
    v_subrev_u32 v19, s6, v18
    s_lshl_b32 s21, s7, 4
    v_mov_b64 v[{XB+6}:{XB+7}], 0
    s_mul_i32 s26, s23, -40960
    v_min_u32 v23, v18, v19
    s_add_u32 s26, s26, 20480
    v_add_u32 v88, s26, v16
    s_mov_b32 s18, {UB}
    v_subrev_u32 v89, s26, v17
    s_mov_b32 s19, s7
    v_subrev_u32 v18, s26, v18
    s_brev_b32 s43, 1
    v_subrev_u32 v19, s26, v19
    v_min_u32 v90, v18, v19
    s_waitcnt lgkmcnt(0)
    s_load_dword s36, s[16:17], s21
    """)
    st(a, 4, True)
    for (R, d, m0, m) in ((X, 16, 23, 17), (XB, 88, 90, 89)):
        a(f"""
        buffer_load_dword v{R}, v{d}, s[4:7], s28 offen {XF}
        buffer_load_dword v{R+1}, v{d}, s[4:7], s29 offen {XF}
        buffer_load_dword v{R+2}, v{d}, s[4:7], s30 offen {XF}
        buffer_load_dword v{R+3}, v{d}, s[4:7], s31 offen {XF}
        s_mov_b64 exec, vcc
        buffer_load_dword v{R+4}, v{m0}, s[4:7], 0 offen {XF}
        buffer_load_dword v{R+5}, v{m}, s[4:7], s15 offen {XF}
        buffer_load_dword v{R+6}, v{m}, s[4:7], s14 offen {XF}
        buffer_load_dword v{R+7}, v{m}, s[4:7], 0 offen {XF}
        s_mov_b64 exec, -1
        """)
    st(a, 5, True)
    a('; ---- stage-1 DFT matrices (16-point DFT with the 128-point twiddle folded in), exchange addresses')
    a(f"""
    s_load_dwordx2 s[8:9], s[0:1], 40
    v_and_b32 v1, 3, v0
    v_and_b32 v{TA}, 1, v0
    v_bfe_u32 v23, v0, 1, 3
    v_lshl_add_u32 v{TA}, v{TA}, 3, v23
    v_xor_b32 v18, 1, v{TB}
    v_cvt_f32_u32 v{TA}, v{TA}
    v_cvt_f32_u32 v{TB}, v{TB}
    v_cvt_f32_u32 v18, v18
    v_mul_f32 v{TA}, {f32(1/128)}, v{TA}
    v_mul_f32 v{TB}, v{TB}, v{TA}
    v_mul_f32 v18, v18, v{TA}
    v_mul_f32 v{TA}, {f32(8.0)}, v{TA}
    s_mov_b32 s33, 0
    """)
    dec = f"""s_lshr_b32 s34, s2, 5
        s_lshl_b32 s34, s34, 3
        s_and_b32 s35, s2, 7
        s_or_b32 s34, s34, s35
        s_bfe_u32 s42, s2, 0x20003
        s_lshl_b32 s42, s42, 9
        s_and_b32 s35, s2, 0xf7
        s_cmp_eq_u32 s35, 16
        s_cselect_b32 s34, 64, s34
        s_cselect_b32 s35, 1024, 0
        s_sub_u32 s42, s42, s35
        s_add_u32 s42, s42, s34""".split('\n')
    for (ang, T, M) in ((TB, D, M1), (18, DB2, M1B)):
        for r in range(4):
            a(f'v_cos_f32 v{T+2*r}, v{ang}')
            a(f'v_sin_f32 v{T+1+2*r}, v{ang}')
            if r < 3: a(f'v_add_f32 v{ang}, v{ang}, v{TA}')
        if M == M1:
            a(f"""
            v_ashrrev_i32 v125, 31, v6
            v_cmp_eq_u32 vcc, 31, v6
            v_and_b32 v124, {0x0302 ^ 0x0c0c}, v125
            v_mov_b32 v126, 0x0c0c0302
            v_xor_b32 v124, 0x05040302, v124
            v_cndmask_b32 v124, v124, v126, vcc
            """)
        else:
            a(f"""
            v_and_b32 v4, 1, v7
            v_lshlrev_b32 v4, 1, v4
            v_xor_b32 v4, v4, v2
            v_lshl_add_u32 v4, v1, 2, v4
            v_lshl_add_u32 v4, v7, 8, v4
            s_lshl_b32 s21, s20, 7
            s_lshl2_add_u32 s21, s23, s21
            v_lshl_add_u32 v4, v4, 3, s21
            v_xor_b32 v127, 4, v4
            """)
        for r in range(4):
            c, s_ = T + 2 * r, T + 1 + 2 * r
            a(f'v_cvt_pk_bf16_f32 v{M+r}, v{c}, v{s_}')
            if M == M1: a(dec[3*r])
            a(f'v_cvt_pk_bf16_f32 v{M+4+r}, -v{s_}, v{c}')
            if M == M1: a(dec[3*r+1])
            a(f'v_cvt_pk_bf16_f32 v{M+8+r}, v{s_}, v{c}')
            if M == M1: a(dec[3*r+2])
            a(f'v_cvt_pk_bf16_f32 v{M+12+r}, v{c}, -v{s_}')
    a('; ---- stage-2 (8-point) matrix and hand-off addresses')
    F2, Q = 16, 24
    a(f"""
    v_cvt_f32_u32 v{TA}, v23
    v_and_b32 v{TB}, 1, v0
    v_cvt_f32_u32 v{TB}, v{TB}
    v_cvt_f32_u32 v33, v2
    v_mul_f32 v{TA}, {f32(0.125)}, v{TA}
    v_mul_f32 v{TB}, {f32(0.25)}, v{TB}
    v_add_f32 v33, v33, v33
    v_fma_f32 v{TB}, v33, v{TA}, v{TB}
    v_add_f32 v{TA}, v{TA}, v{TB}
    v_cos_f32 v120, v{TB}
    v_sin_f32 v121, v{TB}
    v_cos_f32 v18, v{TA}
    v_sin_f32 v19, v{TA}
    v_and_b32 v125, 63, v0
    s_and_b32 s22, s20, 1
    s_lshl_b32 s22, s22, 1
    v_xor_b32 v5, s22, v125
    s_lshl_b32 s21, s20, 11
    v_lshl_add_u32 v5, v5, 3, s21
    v_lshl_add_u32 v6, v2, 3, v3
    v_lshl_add_u32 v6, v6, 2, v7
    v_lshlrev_b32 v6, 14, v6
    v_lshl_add_u32 v6, v1, 4, v6
    v_cvt_pk_bf16_f32 v{F2}, v120, v121
    v_cvt_pk_bf16_f32 v{F2+1}, v18, v19
    s_lshl_b32 s28, s12, 10
    s_lshl_b32 s29, s13, 6
    s_add_u32 s28, s28, s29
    s_add_u32 s29, s28, {16*16384}
    """)
    a('; ---- stage 1: fold direct + mirror rows inside the MFMA accumulator')
    st(a, 3, True)
    def fix(R):
        for r in range(4):
            a(f'v_mov_b32_dpp v{120+r}, v{R+r} quad_perm:[1,2,3,3] row_mask:0xf bank_mask:0xf')
        for r in range(4):
            a(f'v_perm_b32 v{R+r}, v{120+r}, v{R+r}, v124')
    def mm(Dr, R, M, first):
        for p in range(2):
            c = '0' if first else f'v[{Dr+4*p}:{Dr+4*p+3}]'
            a(f'v_mfma_f32_16x16x32_bf16 v[{Dr+4*p}:{Dr+4*p+3}], v[{R}:{R+3}], v[{M+4*p}:{M+4*p+3}], {c}')
    def wr(Dr, R, ad):
        for i in range(3):
            a(f'v_cvt_pk_bf16_f32 v{R+i}, v{Dr+i}, v{Dr+4+i}')
            a(f'ds_write_b32 v{ad}, v{R+i} offset:{512*i}')
    a('s_waitcnt vmcnt(12)'); fix(X); mm(D, X, M1, True)
    a('s_waitcnt vmcnt(8)'); mm(D, X + 4, M1 + 8, False)
    a('s_waitcnt vmcnt(4)'); fix(XB); mm(DB2, XB, M1B, True)
    wr(D, X, 4)
    a('s_waitcnt vmcnt(0)')
    st(a, 1)
    mm(DB2, XB + 4, M1B + 8, False)
    wr(DB2, XB, 127)
    a('s_waitcnt lgkmcnt(0)')
    a('s_barrier')
    a('; ---- stage 2 + hand-off stores: 16-byte granules = 3 complex bf16 values + launch tag')
    for T in range(3):
        a(f'ds_read_b64 v[{X+2*T}:{X+2*T+1}], v5 offset:{512*T}')
    a(f's_add_u32 s36, s36, {TAGC}')
    a(f'v_mov_b32 v{Q+3}, s36')
    a(f'v_mov_b32 v{Q+7}, s36')
    for T in range(3):
        a(f's_waitcnt lgkmcnt({2-T})')
        a(f'v_mfma_f32_16x16x16_bf16 v[{M1+4*T}:{M1+4*T+3}], v[{F2}:{F2+1}], v[{X+2*T}:{X+2*T+1}], 0')
    for T in range(2):
        for e in range(2):
            a(f'v_cvt_pk_bf16_f32 v{Q+4*e+T}, v{M1+4*T+2*e}, v{M1+4*T+2*e+1}')
    for e in range(2):
        a(f'v_cvt_pk_bf16_f32 v{Q+4*e+2}, v{M1+8+2*e}, v{M1+8+2*e+1}')
        a(f'buffer_store_dwordx4 v[{Q+4*e}:{Q+4*e+3}], v6, s[16:19], s{28+e} offen {UF}')
    st(a, 2)
    T0 = 68
    a('; ---- pass-2 job decode, stage-A matrix (16-point over rho, two-for-one split)')
    a(f'''
    s_sub_u32 s35, 128, s34
    ''')
    for d, t in ((38, 34), (40, 35)):
        a(f'''s_and_b32 s{d}, s{t}, 0x70
        s_and_b32 s21, s{t}, 7
        s_lshl1_add_u32 s{d}, s21, s{d}
        s_bfe_u32 s21, s{t}, 0x10003
        s_add_u32 s{d}, s{d}, s21
        s_lshl_b32 s{d}, s{d}, 14
        s_add_u32 s{d+1}, s{d}, 8192''')
    a(f'''
    v_lshlrev_b32 v5, 11, v2
    v_lshl_add_u32 v5, v3, 8, v5
    v_lshl_add_u32 v5, v22, 4, v5
    v_lshl_add_u32 v{T0}, v3, 2, v7
    v_min_u32 v{T0}, 14, v{T0}
    v_mul_u32_u24 v{T0+1}, 43, v{T0}
    v_lshrrev_b32 v{T0+1}, 7, v{T0+1}
    v_mad_i32_i24 v{T0}, v{T0+1}, -3, v{T0}
    v_mul_u32_u24 v{T0}, 21, v{T0}
    v_lshrrev_b32 v{T0}, 1, v{T0}
    v_mad_u32_u24 v{T0}, v1, 3, v{T0}
    v_lshl_add_u32 v{T0+2}, v{T0+1}, 5, v{T0}
    v_cmp_eq_u32 vcc, 0, v{T0}
    v_cmp_ne_u32 s[46:47], 0, v{T0+1}
    v_add_u32 v{T0+1}, {SPEC//2}, v{T0+1}
    v_mul_u32_u24 v6, {VS}, v2
    s_and_b64 vcc, vcc, s[46:47]
    v_cndmask_b32 v{T0+1}, v{T0+2}, v{T0+1}, vcc
    v_lshl_add_u32 v4, v{T0+1}, 3, v6
    v_lshl_add_u32 v6, v{T0+2}, 3, v6
    {'s_barrier' if OPT.get('late') == '1' else ''}
    v_and_b32 v{T0+1}, 1, v0
    s_cmp_eq_u32 s2, 0
    s_cselect_b32 s31, 1, 99
    v_and_b32 v{T0+2}, 13, v0
    v_cmp_eq_u32 vcc, s31, v{T0+2}
    v_lshlrev_b32 v{T0+3}, 1, v2
    v_cvt_f32_u32 v{T0+3}, v{T0+3}
    v_bfe_u32 v{T0+2}, v0, 1, 1
    v_cndmask_b32 v{T0}, v7, 8, vcc
    v_cndmask_b32 v{T0+1}, v{T0+1}, 0, vcc
    v_lshl_add_u32 v{T0}, v{T0}, 7, s42
    v_cvt_f32_u32 v{T0}, v{T0}
    v_mul_f32 v{T0}, {f32(1/2048)}, v{T0}
    v_add_u32 v{T0+1}, v{T0+1}, v{T0+2}
    v_cvt_f32_u32 v{T0+1}, v{T0+1}
    v_mul_f32 v{T0+1}, {f32(0.25)}, v{T0+1}
    v_fma_f32 v{T0+1}, v{T0}, v{T0+3}, v{T0+1}
    v_add_f32 v{T0+3}, v{T0+1}, v{T0}
    v_cos_f32 v{T0+4}, v{T0+1}
    v_sin_f32 v{T0+5}, v{T0+1}
    v_cos_f32 v{T0+6}, v{T0+3}
    v_sin_f32 v{T0+7}, v{T0+3}
    v_fmamk_f32 v{T0+1}, v{T0}, {f32(8.0)}, v{T0+1}
    v_fmamk_f32 v{T0+3}, v{T0}, {f32(8.0)}, v{T0+3}
    v_cos_f32 v{T0+8}, v{T0+1}
    v_sin_f32 v{T0+9}, v{T0+1}
    v_cos_f32 v{T0+10}, v{T0+3}
    v_sin_f32 v{T0+11}, v{T0+3}
    {'s_barrier' if OPT.get('late') == '2' else ''}
    v_lshlrev_b32 v{T0+2}, 4, v{T0+2}
    v_lshrrev_b32 v{T0+2}, v{T0+2}, s43
    ''')
    for k in range(4):
        a(f'v_pk_mul_f32 v[{T0+4+2*k}:{T0+5+2*k}], v[{T0+4+2*k}:{T0+5+2*k}], 0.5 op_sel_hi:[1,0]')
    for k in range(4):
        a(f'v_cvt_pk_bf16_f32 v{MA+2*k}, v{T0+4+2*k}, v{T0+5+2*k}')
    for k in range(4):
        a(f'v_xor_b32 v{MA+2*k+1}, v{MA+2*k}, v{T0+2}')
    LR = [G0, G1]
    def uloads():
        for kh in range(2):
            for k in range(4):
                a(f'buffer_load_dwordx4 v[{LR[kh]+4*k}:{LR[kh]+4*k+3}], v5, s[16:19], s{(38 if k % 2 == 0 else 40)+kh} offen offset:{1024*(k>>1)} {UL}')
    EARLY = int(OPT.get('early', 0))
    if EARLY:
        a('s_waitcnt vmcnt(0)'); st(a, 3); uloads()
    a('; ---- pass-2 constants from LDS, stage-B matrix, output addresses')
    T0 = DA
    a(f'''
    L_rdc:
    v_and_b32 v{T0}, 63, v0
    v_lshlrev_b32 v{T0+1}, 4, v{T0}
    ''')
    for k in range(15):
        if k % 3 == 2:
            a(f'ds_read_b64 v[{FC+4*k}:{FC+4*k+1}], v{T0+1} offset:{LDS_C+1024*k}')
        else:
            a(f'ds_read_b128 v[{FC+4*k}:{FC+4*k+3}], v{T0+1} offset:{LDS_C+1024*k}')
    AMI, AM2, ABP, ASP, AIN = FC + 10, FC + 11, FC + 22, FC + 23, FC + 34
    a(f'''
    v_add_u32 v{ABP}, 16, v{T0}
    v_and_b32 v{T0}, 15, v0
    v_cvt_f32_u32 v{T0+1}, v{T0}
    v_cvt_f32_u32 v{T0+2}, v2
    v_mul_f32 v{T0+1}, {f32(1/16)}, v{T0+1}
    v_add_f32 v{T0+2}, v{T0+2}, v{T0+2}
    v_mul_f32 v{T0+2}, v{T0+2}, v{T0+1}
    v_add_f32 v{T0+1}, v{T0+1}, v{T0+2}
    v_cos_f32 v{T0+3}, v{T0+2}
    v_sin_f32 v{T0+4}, v{T0+2}
    v_cos_f32 v{T0+5}, v{T0+1}
    v_sin_f32 v{T0+6}, v{T0+1}
    s_and_b32 s25, s20, 3
    s_mul_i32 s24, s25, {VS}
    s_add_u32 s24, s24, {LDS_V+4}
    v_min_u32 v1, 1, v1
    v_lshl_add_u32 v7, v7, 1, v1
    v_mul_u32_u24 v3, 320, v2
    v_add_u32 v3, s24, v3
    v_lshl_add_u32 v7, v7, 2, v3
    v_lshl_add_u32 v3, v{T0}, 2, v3
    v_lshl_add_u32 v{ASP}, v2, 3, s24
    v_mov_b32 v{AIN}, s24
    v_lshlrev_b32 v1, 3, v2
    v_lshl_add_u32 v1, v{T0}, 5, v1
    v_lshlrev_b32 v2, 28, v{T0}
    v_and_or_b32 v2, v2, s43, v1
    v_cvt_pk_bf16_f32 v{BR}, v{T0+3}, v{T0+4}
    v_cvt_pk_bf16_f32 v{BR+1}, v{T0+5}, v{T0+6}
    v_cvt_pk_bf16_f32 v{BI}, -v{T0+4}, v{T0+3}
    v_cvt_pk_bf16_f32 v{BI+1}, -v{T0+6}, v{T0+5}
    s_lshl_b32 s21, s25, 7
    s_add_u32 s21, s21, s42
    s_sub_u32 s22, 2048, s21
    s_mul_i32 s22, s22, 1280
    s_lshr_b32 s27, s21, 6
    s_and_b32 s23, s21, 1023
    s_cselect_b32 s22, s22, 0
    s_cselect_b32 s23, 0, s43
    s_cselect_b32 s26, -1, 0xffff
    s_cselect_b32 s27, 0, s27
    s_mul_i32 s21, s21, 1280
    s_mul_i32 s25, s27, 0x202000
    s_add_u32 s25, s25, 0x01000c0c
    s_mov_b32 s50, 0
    s_mov_b32 s51, s43
    v_sub_u32 v{AM2}, 248, v1
    v_and_b32 v{AM2}, 0x80000fff, v{AM2}
    v_and_b32 v{AMI}, 8, v1
    v_mad_u32_u24 v1, v{AMI}, 63, v1
    v_sub_u32 v{AMI}, 1264, v1
    v_or_b32 v{AMI}, s23, v{AMI}
    v_or_b32 v{AM2}, s23, v{AM2}
    v_lshrrev_b32 v{T0}, 6, v{ABP}
    v_and_b32 v{ABP}, 63, v{ABP}
    v_add_lshl_u32 v{ABP}, v{ABP}, v{T0}, 2
    v_cndmask_b32 v{ABP}, v{ABP}, 0, s[50:51]
    s_mov_b32 s10, {NB}
    s_mov_b32 s11, 0x20000
    s_mov_b64 s[44:45], 0x1000000
    s_movk_i32 s52, 0x100
    s_mov_b32 s53, 0x10000
    s_mov_b32 s54, 0
    s_mov_b32 s55, 1
    s_mov_b32 s56, 0x00ff00ff
    s_mov_b32 s57, s56
    s_mov_b32 vcc_lo, -1
    s_mov_b32 vcc_hi, 0
    ''')
    for r in (BR, BR + 1, BI, BI + 1):
        a(f'v_and_b32 v{r}, s26, v{r}')
    for r in (BR, BR + 1, BI, BI + 1):
        a(f'v_lshlrev_b32 v{r}, s27, v{r}')
    a(f'''
    v_mov_b32 v{BR+3}, 0
    v_mov_b32 v{BI+3}, 0
    v_cndmask_b32 v{BR+2}, v{BR}, v{BR+1}, vcc
    v_cndmask_b32 v{BI+2}, v{BI}, v{BI+1}, vcc
    s_mov_b64 s[48:49], -1
    {'s_mov_b64 s[46:47], -1' if EARLY else ''}
    s_cmp_eq_u32 s20, 4
    s_cbranch_scc1 L_b3
    {'s_branch L_wait' if EARLY else ''}
    ; ---- own hand-off stores acknowledged -> gather this job (retries reload only the missing quads)
    L_retry:
    s_wqm_b64 s[46:47], s[48:49]
    s_mov_b64 exec, s[46:47]
    ''')
    if BOUND:
        a(f'''s_add_u32 s33, s33, 1
        s_cmp_ge_u32 s33, {BOUND}
        s_cbranch_scc1 L_go''')
    if RSLEEP: a(f's_sleep {RSLEEP}')
    if DIAG: a(f's_add_u32 s{diag.SB+12}, s{diag.SB+12}, 1')
    if 'wgb' in OPT:
        a('s_cmp_lg_u32 s33, 1\n s_waitcnt vmcnt(0)\n s_cbranch_scc1 L_nb\n s_barrier\n L_nb:')
    if 'noack' not in OPT: a('s_waitcnt vmcnt(0)')
    if OPT.get('noack') == '2': a('s_waitcnt vmcnt(1)')
    if DIAG and not EARLY: a(f's_cmp_lg_u32 s33, 1\n s_cbranch_scc1 L_nst'); st(a, 3); a('L_nst:') if DIAG else None
    uloads()
    a('L_wait:')
    def shuffle(G):
        a(f'''
        v_swap_b32 v{G+1}, v{G+4}
        v_swap_b32 v{G+2}, v{G+8}
        v_mov_b32 v{G+3}, v{G+12}
        v_swap_b32 v{G+6}, v{G+9}
        v_mov_b32 v{G+7}, v{G+13}
        v_mov_b32 v{G+11}, v{G+14}
        ''')
    def amfma(kh):
        for T in range(3):
            c = '0' if kh == 0 else f'v[{DA+4*T}:{DA+4*T+3}]'
            a(f'v_mfma_f32_16x16x32_bf16 v[{DA+4*T}:{DA+4*T+3}], v[{MA+4*kh}:{MA+4*kh+3}], v[{LR[kh]+4*T}:{LR[kh]+4*T+3}], {c}')
    for kh in range(2):
        G = LR[kh]
        after = {1: [f'v_swap_b32 v{G+1}, v{G+4}'], 2: [f'v_swap_b32 v{G+2}, v{G+8}', f'v_swap_b32 v{G+6}, v{G+9}'],
                 3: [f'v_mov_b32 v{G+3}, v{G+12}', f'v_mov_b32 v{G+7}, v{G+13}', f'v_mov_b32 v{G+11}, v{G+14}']}
        for k in range(4):
            a(f's_waitcnt vmcnt({7-4*kh-k})')
            a(f'v_cmpx_eq_u32 vcc, s36, v{G+4*k+3}')
            for l in after.get(k, []): a(l)
        if kh == 0:
            a('s_mov_b64 exec, -1')
            amfma(0)
            a('s_mov_b64 exec, vcc')
    a('s_andn2_b64 s[48:49], s[46:47], vcc')
    a('s_cbranch_scc1 L_retry')
    a('L_go:')
    a('s_mov_b64 exec, -1')
    st(a, 4)
    amfma(1)
    VO, Y, P, INI, TT = 8, 8, 20, 4, 30
    DB = [96, 112, 120]
    TT = 104
    for T in range(3):
        for pi in range(2):
            a(f'v_cvt_pk_bf16_f32 v{20+2*T+pi}, v{DA+4*T+2*pi}, v{DA+4*T+2*pi+1}')
        a(f'ds_write_b64 v{4 if T == 0 else 6}, v[{20+2*T}:{21+2*T}] offset:{LDS_V+8*T}')
    INI = 28
    a(f'''
    L_b3:
    v_mov_b32 v{VO+3}, 0
    v_mov_b32 v{VO+7}, 0
    v_mov_b32 v{VO+11}, 0
    s_waitcnt lgkmcnt(0)
    s_barrier
    ''')
    if DIAG:
        st(a, 5); a('s_waitcnt lgkmcnt(0)')
    a('; ---- 640-point DFT of one row: stage B (16), twiddle, stage C (40), real part only')
    a(f'''
    ds_read_b32 v{VO+10}, v{ASP} offset:{4*(SPEC+2)}
    ds_read2_b32 v[{VO}:{VO+1}], v3 offset0:0 offset1:40
    ds_read2_b32 v[{VO+4}:{VO+5}], v3 offset0:16 offset1:56
    ds_read2_b32 v[{VO+8}:{VO+9}], v7 offset0:32 offset1:72
    ds_read_b32 v{INI}, v{AIN} offset:1280
    s_waitcnt lgkmcnt(4)
    v_cndmask_b32 v{VO+2}, 0, v{VO+10}, s[44:45]
    v_cndmask_b32 v{VO+6}, 0, v{VO+10}, s[52:53]
    v_cndmask_b32 v{VO+10}, 0, v{VO+10}, s[54:55]
    ''')
    def tw(t):
        n = 4 if t < 2 else 2
        o = []
        for r in range(n): o.append(f'v_mul_f32 v{TT+r}, v{DB[t]+r}, v{TC+4*t+r}')
        for r in range(n): o.append(f'v_fmac_f32 v{TT+r}, v{DB[t]+4+r}, v{TS+4*t+r}')
        for r in range(n): o.append(f'v_mul_f32 v{DB[t]+4+r}, v{DB[t]+4+r}, v{TC+4*t+r}')
        for r in range(n): o.append(f'v_fma_f32 v{DB[t]+4+r}, -v{DB[t]+r}, v{TS+4*t+r}, v{DB[t]+4+r}')
        for r in range(n): o.append(f'v_cvt_pk_bf16_f32 v{PP[t]+r}, v{TT+r}, v{DB[t]+4+r}')
        return o
    PP = [20, 24, 4]
    def cm(t, b):
        n = 4 if t < 2 else 2
        c = f'v[{INI}:{INI+3}]' if t == 0 else f'v[{Y+4*b}:{Y+4*b+3}]'
        mn = 'v_mfma_f32_16x16x32_bf16' if t < 2 else 'v_mfma_f32_16x16x16_bf16'
        return f'{mn} v[{Y+4*b}:{Y+4*b+3}], v[{PP[t]}:{PP[t]+n-1}], v[{FC+12*b+4*t}:{FC+12*b+4*t+n-1}], {c}'
    def bm(t, p):
        return f'v_mfma_f32_16x16x32_bf16 v[{DB[t]+4*p}:{DB[t]+4*p+3}], v[{VO+4*t}:{VO+4*t+3}], v[{(BR, BI)[p]}:{(BR, BI)[p]+3}], 0'
    ini = [f'v_perm_b32 v{INI}, v{INI}, v{INI}, s25', f'v_xor_b32 v{INI+1}, s43, v{INI}', f'v_mov_b64 v[{INI+2}:{INI+3}], v[{INI}:{INI+1}]']
    if int(OPT.get('ts', 1)):
        w = tw(0)
        a('s_waitcnt lgkmcnt(3)'); a(bm(0, 0)); a(bm(0, 1))
        a('s_waitcnt lgkmcnt(2)'); a(bm(1, 0))
        a('s_waitcnt lgkmcnt(0)')
        for l in ini: a(l)
        a(bm(1, 1))
        for l in w[0:4]: a(l)
        a(bm(2, 0))
        for l in w[4:8]: a(l)
        a(bm(2, 1))
        for l in w[8:]: a(l)
    else:
        for t in range(3):
            a(f's_waitcnt lgkmcnt({3-t})'); a(bm(t, 0)); a(bm(t, 1))
        a('s_waitcnt lgkmcnt(0)')
        for l in ini: a(l)
        for l in tw(0): a(l)
    for t in (1, 2):
        w = tw(t)
        k = 0
        for b in range(3):
            a(w[k]); a(w[k+1]); k += 2
            a(cm(t - 1, b))
        for l in w[k:]: a(l)
    for b in range(3): a(cm(2, b))
    if 'tail' in OPT: st(a, 2)
    a('; ---- store row t and its mirror row -t (y[-t,-e] = y[t,e])')
    O = 96; R = 104; Mi = 112
    for b in range(3):
        a(f'ds_bpermute_b32 v{R+b}, v{ABP}, v{Y+4*b}')
    MI = [Mi + 2, Mi, Mi + 4]
    for b in range(3):
        a(f'v_cvt_pk_bf16_f32 v{O+2*b}, v{Y+4*b}, v{Y+4*b+1}')
        a(f'v_cvt_pk_bf16_f32 v{O+2*b+1}, v{Y+4*b+2}, v{Y+4*b+3}')
    a(f'v_permlane16_swap_b32 v{O}, v{O+2}')
    a(f'v_permlane16_swap_b32 v{O+1}, v{O+3}')
    a(f'buffer_store_dwordx4 v[{O}:{O+3}], v1, s[8:11], s21 offen {SCY}')
    if YX: a('s_mov_b64 exec, s[56:57]')
    a(f'buffer_store_dwordx2 v[{O+4}:{O+5}], v2, s[8:11], s21 offen offset:1024 {SCY}')
    if YX: a('s_mov_b64 exec, -1')
    for b in range(3):
        a(f'v_cvt_pk_bf16_f32 v{MI[b]+1}, v{Y+4*b+2}, v{Y+4*b+1}')
    a('s_waitcnt lgkmcnt(0)')
    a(f'v_cndmask_b32 v{R}, v{R}, v{R+1}, s[50:51]')
    a(f'v_cndmask_b32 v{R+1}, v{R+1}, v{R+2}, s[50:51]')
    a(f'v_permlane16_swap_b32 v{MI[0]+1}, v{MI[1]+1}')
    for b in range(3):
        a(f'v_cvt_pk_bf16_f32 v{MI[b]}, v{R+b}, v{Y+4*b+3}')
    if YX:
        a(f'v_permlane16_swap_b32 v{MI[0]}, v{MI[1]}')
        a(f'buffer_store_dwordx4 v[{Mi}:{Mi+3}], v{AMI}, s[8:11], s22 offen {SCY}')
        a('s_mov_b64 exec, s[56:57]')
        a(f'buffer_store_dwordx2 v[{MI[2]}:{MI[2]+1}], v{AM2}, s[8:11], s22 offen {SCY}')
        if DIAG: a('s_mov_b64 exec, -1')
    else:
        a(f'buffer_store_dwordx2 v[{MI[2]}:{MI[2]+1}], v{AM2}, s[8:11], s22 offen {SCY}')
        a(f'v_permlane16_swap_b32 v{MI[0]}, v{MI[1]}')
        a(f'buffer_store_dwordx4 v[{Mi}:{Mi+3}], v{AMI}, s[8:11], s22 offen {SCY}')
    if 'tail' in OPT: st(a, 6)
    a('L_fin:')
    if DIAG: diag.stamp_store(a, 0, 16, vb=100)
    a('L_end:')
    a('s_endpgm')
    a('; ---- waves 4..7: pass-2 constants (40-point matrix, 640-point twiddles) shared through LDS')
    C0 = 32; CC = 40; CS = 52
    a(f"""
    L_aux:
    s_and_b32 s24, s20, 3
    v_cvt_f32_u32 v33, v2
    v_and_b32 v125, 63, v0
    v_add_f32 v33, v33, v33
    s_lshl_b32 s22, s24, 4
    s_cmp_eq_u32 s24, 3
    s_cselect_b32 s22, 0, s22
    s_mov_b32 s23, {f32(1/40)}
    s_cselect_b32 s23, {f32(1/640)}, s23
    v_add_u32 v{C0}, s22, v22
    v_cvt_f32_u32 v{C0}, v{C0}
    v_mul_f32 v{C0}, s23, v{C0}
    v_mul_f32 v{C0+1}, v{C0+1}, v{C0}
    v_add_f32 v{C0+2}, v{C0+1}, v{C0+1}
    v_fmamk_f32 v{C0+1}, v{C0}, {f32(32.0)}, v{C0+1}
    v_fmamk_f32 v{C0+3}, v{C0}, {f32(16.0)}, v{C0+2}
    s_mul_i32 s22, s24, 3072
    v_lshl_add_u32 v{C0+4}, v125, 4, s22
    """)
    for i in range(4):
        for base, off in ((C0 + 2, 0), (C0 + 3, 4), (C0 + 1, 8)):
            if off == 8 and i >= 2: continue
            a(f'v_cos_f32 v{CC+off+i}, v{base}')
            a(f'v_sin_f32 v{CS+off+i}, v{base}')
            if i < (1 if off == 8 else 3): a(f'v_add_f32 v{base}, v{base}, v{C0}')
    a('s_cbranch_scc1 L_craw')
    for j in range(10):
        a(f'v_cvt_pk_bf16_f32 v{CC+j}, v{CC+j}, v{CS+j}')
    a('s_branch L_cw')
    a('L_craw:')
    for k in range(3):
        a(f'ds_write_b128 v{C0+4}, v[{CS+4*k}:{CS+4*k+3}] offset:{LDS_C+3072+1024*k}')
    a('L_cw:')
    for k in range(3):
        a(f'ds_write_b128 v{C0+4}, v[{CC+4*k}:{CC+4*k+3}] offset:{LDS_C+1024*k}')
    a(f'''
    ; ---- wave 4 stays only in workgroup 0 (row 1024) and workgroup 1 (epoch update)
    s_lshl_b32 s22, s24, 8
    s_or_b32 s22, s22, s2
    s_cmp_gt_u32 s22, 1
    s_waitcnt lgkmcnt(0)
    s_cbranch_scc1 L_end
    s_mov_b32 s18, {UB}
    s_mov_b32 s19, 0x20000
    s_mov_b32 s21, {EO}
    s_brev_b32 s43, 1
    s_load_dword s36, s[16:17], s21
    s_load_dwordx2 s[8:9], s[0:1], 40
    v_and_b32 v1, 3, v0
    v_mov_b32 v5, 0
    s_movk_i32 s42, 1024
    s_waitcnt vmcnt(0) lgkmcnt(0)
    s_barrier
    {'s_barrier' if 'wgb' in OPT else ''}
    s_cmp_eq_u32 s2, 0
    s_cbranch_scc1 L_rdc
    s_add_u32 s36, s36, {TAGC}
    v_mov_b32 v8, s36
    s_mov_b64 exec, 1
    s_barrier
    buffer_store_dword v8, off, s[16:19], s21 sc1
    s_endpgm
    L_codeend:
    ''')
    return 128

PAGE = (f'.p2alignl 12, 0xbf800000\n.fill {(4096 - 768 + int(OPT.get("pgo", 0))) // 4}, 4, 0xbf800000\n' if int(OPT.get('page', 0)) else '')
def main(out):
    a = Asm(); nv = kernel(a); a.pad(True)
    s = f'''; FNet Fourier mixing y = Re(DFT_seq(DFT_hid(x))), x,y: 2048 x 640 bf16, computed as a 2-D FFT on the MFMA units.
; Kernarg (64 B): x @0, dft_seq_re @8, dft_seq_im @16, dft_hid_re @24, dft_hid_im @32, out @40, debug @48, ws @56.
; The DFT matrices are constants of the problem; their entries are regenerated with v_sin/v_cos.
; cos is even, so x[s,d] and x[-s,-d] are folded first and only columns 0..320 are transformed.
; Pass 1: 128-point DFT over rows s = 16*sigma + rho (two real columns per complex lane value).
; Hand-off through d_ws: write-through 16-B granules carrying a per-launch tag (epoch word in d_ws + constant);
;   consumers verify every tag, so no placement or timing assumption is needed for correctness.
; Pass 2: 16-point DFT over rho, then a 640-point DFT (16 x 40) per output row; rows t and -t are stored together.
; @launch grid=(256,1,1) block=(512,1,1) lds={LDS_TOTAL}
.amdgcn_target "amdgcn-amd-amdhsa--gfx950"
.text
.globl {KN}
{PAGE}.p2align 8
.type {KN},@function
''' + a.text()
    s += f'''.section .rodata,"a"
.p2align 6
.amdhsa_kernel {KN}
  .amdhsa_next_free_vgpr {nv}
  .amdhsa_next_free_sgpr {96 if DIAG else 58}
  .amdhsa_accum_offset {nv}
  .amdhsa_group_segment_fixed_size 0
  .amdhsa_kernarg_size 64
  .amdhsa_user_sgpr_count 2
  .amdhsa_user_sgpr_kernarg_segment_ptr 1
  .amdhsa_system_sgpr_workgroup_id_x 1
  .amdhsa_float_denorm_mode_32 3
.end_amdhsa_kernel
'''
    open(out, 'w').write(s)

main(sys.argv[1])
```
